```python
import torch

def _softmax(x, axis=-1):
    return torch.softmax(x, dim=axis)
def _gelu(x):
    return torch.nn.functional.gelu(x, approximate="tanh")
def _silu(x):
    return torch.nn.functional.silu(x)
def _sigmoid(x):
    return torch.sigmoid(x)
def _layernorm(x, axis=-1, eps=1e-5):
    m = x.mean(dim=axis, keepdim=True)
    v = x.var(dim=axis, keepdim=True, unbiased=False)
    return (x - m) / torch.sqrt(v + eps)
def _scatter_add(tgt, idx, src, axis=0):
    return tgt.clone().index_add_(axis, idx, src)
def _segment_sum(src, seg, n):
    out = torch.zeros((n,) + src.shape[1:], dtype=src.dtype)
    return out.index_add_(0, seg, src)
def _pad(x, pw):
    flat = tuple(v for pair in reversed(pw) for v in pair)
    return torch.nn.functional.pad(x, flat)

kernel_name = 'concat_heads__softmax_full_mha__ssm_conv_h3__prompt'

def setup_inputs():

    _w = (lambda a: (lambda t: t.to(torch.bfloat16) if t.is_floating_point() else t)(torch.as_tensor(a)))
    def _A_setup():
        B, S, D = 1, 2048, 448
        return {
            "x": _w((lambda *s: torch.randn(*s, dtype=torch.bfloat16) * 0.2)(B, S, D)),
            "wqkv": _w((lambda *s: torch.randn(*s, dtype=torch.bfloat16) * 0.2)(D, 3 * D)),
            "wo": _w((lambda *s: torch.randn(*s, dtype=torch.bfloat16) * 0.05)(D, D)),
        }
    _A_in = _A_setup()

    def _B_setup():
        B, S, D = 1, 2048, 448
        ks = 4
        return {
            "q": _w((lambda *s: torch.randn(*s, dtype=torch.bfloat16) * 0.05)(B, S, D)),
            "k": _w((lambda *s: torch.randn(*s, dtype=torch.bfloat16) * 0.4)(B, S, D)),
            "v": _w((lambda *s: torch.randn(*s, dtype=torch.bfloat16) * 0.4)(B, S, D)),
            "shift_k": _w((lambda *s: torch.randn(*s, dtype=torch.bfloat16) * 0.4)(D, ks) * 0.5),
            "ssm_k": _w((lambda *s: torch.randn(*s, dtype=torch.bfloat16) * 0.8)(D, S) * (1.0 / S ** 0.5)),
            "ssm_D": _w((lambda *s: torch.randn(*s, dtype=torch.bfloat16) * 0.4)(D)),
        }
    _B_in = _B_setup()

    return {
        "A_x": _A_in["x"],
        "A_wqkv": _A_in["wqkv"],
        "A_wo": _A_in["wo"],
        "B_q": _B_in["q"],
        "B_k": _B_in["k"],
        "B_v": _B_in["v"],
        "B_shift_k": _B_in["shift_k"],
        "B_ssm_k": _B_in["ssm_k"],
        "B_ssm_D": _B_in["ssm_D"],
    }

def reference(A_x, A_wqkv, A_wo, B_q, B_k, B_v, B_shift_k, B_ssm_k, B_ssm_D):
    def _A_ref(x, wqkv, wo):
        B, S, D = x.shape
        H = 16; Dh = D // H
        qkv = (lambda x, *d: x.permute(*d))((x @ wqkv).reshape(B, S, 3, H, Dh), 2, 0, 3, 1, 4)
        q, k, v = qkv[0], qkv[1], qkv[2]
        scale = Dh ** -0.5
        scores = torch.einsum("bhqd,bhkd->bhqk", q, k) * scale
        p = _softmax(scores, axis=-1)
        o = torch.einsum("bhqk,bhkd->bhqd", p, v)
        return (lambda x, *d: x.permute(*d))(o, 0, 2, 1, 3).reshape(B, S, D) @ wo

    def _B_ref(q, k, v, shift_k, ssm_k, ssm_D):
        B, S, D = q.shape
        ks = shift_k.shape[-1]
        k_pad = _pad(k, ((0, 0), (ks - 1, 0), (0, 0)))
        k_shift = torch.zeros_like(k)
        for t in range(ks):
            k_shift = k_shift + k_pad[:, t:t + S, :] * shift_k[:, ks - 1 - t][None, None, :]
        kv = k_shift * v
        L = 2 * S
        kv_pad = _pad(kv, ((0, 0), (0, S), (0, 0)))
        kf_pad = _pad(ssm_k, ((0, 0), (0, S)))
        kv_f = (lambda x, axes=(-2,-1): torch.fft.rfft2(x.float(), dim=axes))(kv_pad[:, None, :, :], axes=(1, 2))
        kf_f = (lambda x, axes=(-2,-1): torch.fft.rfft2(x.float(), dim=axes))(kf_pad[:, None, :], axes=(1, 2))
        kf_f = (lambda x, *d: x.permute(*d))(kf_f, 1, 2, 0)
        y_f = kv_f * kf_f[None, :, :, :]
        y = (lambda x, s, axes=(-2,-1): torch.fft.irfft2(x, s=s, dim=axes).to(torch.bfloat16))(y_f, (1, L), axes=(1, 2))[:, 0, :S, :]
        y = y + kv * ssm_D[None, None, :]
        return q * y

    a = _A_ref(A_x, A_wqkv, A_wo)
    b = _B_ref(B_q, B_k, B_v, B_shift_k, B_ssm_k, B_ssm_D)
    return torch.concatenate([a, b], axis=-1)
```

```python
import re

TRANS = ("v_exp_f32", "v_log_f32", "v_rcp_f32", "v_rsq_f32", "v_sqrt_f32", "v_sin_f32", "v_cos_f32")

def regs_of(tok):
    tok = tok.strip()
    tok = tok.lstrip("-")
    if tok.startswith("abs(") and tok.endswith(")"): tok = tok[4:-1]
    if tok.startswith("|") and tok.endswith("|"): tok = tok[1:-1]
    m = re.fullmatch(r"([vsa])(\d+)", tok)
    if m: return [(m.group(1), int(m.group(2)))]
    m = re.fullmatch(r"([vsa])\[(\d+):(\d+)\]", tok)
    if m: return [(m.group(1), i) for i in range(int(m.group(2)), int(m.group(3)) + 1)]
    if tok == "vcc": return [("s", "vcc")]
    if tok == "exec": return [("s", "exec")]
    if tok == "m0": return [("s", "m0")]
    return []

class Ins:
    def __init__(self, text):
        self.text = text
        t = text.split(";")[0].strip()
        self.label = t[:-1] if t.endswith(":") else None
        self.directive = t.startswith(".")
        self.op = "" if (self.label or self.directive or not t) else t.split()[0]
        rest = t[len(self.op):].strip() if self.op else ""
        self.ops = [o.strip() for o in rest.split(",")] if rest else []
        if self.ops:
            last = self.ops[-1].split()
            self.mods = [m for o in self.ops for m in o.split()[1:]]
            self.ops = [o.split()[0] if o.split() else o for o in self.ops]
        else: self.mods = []
        op = self.op
        self.mfma = op.startswith("v_mfma")
        self.valu = op.startswith("v_") and not self.mfma
        self.trans = any(op.startswith(x) for x in TRANS)
        self.ds = op.startswith("ds_")
        self.vmem = op.startswith(("buffer_", "global_"))
        self.salu = op.startswith("s_")
        R = [regs_of(o) for o in self.ops]
        self.w, self.r = [], []
        self.srcc = []; self.srcab = []; self.storedata = []
        if self.mfma:
            self.w = R[0]; self.srcab = R[1] + R[2]; self.srcc = R[3]; self.r = self.srcab + self.srcc
            self.passes = 8 if "32x32" in op else 4
        elif self.valu:
            if op.startswith(("v_swap", "v_permlane32_swap", "v_permlane16_swap")):
                self.w = R[0] + R[1]; self.r = R[0] + R[1]
            elif op.startswith("v_cmp"):
                self.w = R[0]; self.r = sum(R[1:], [])
            elif "_co_" in op:
                self.w = R[0] + R[1]; self.r = sum(R[2:], [])
            else:
                self.w = R[0]; self.r = sum(R[1:], [])
                if op.startswith(("v_fmac", "v_writelane")): self.r += R[0]
                if op.startswith("v_cndmask") and len(self.ops) == 3: self.r += [("s", "vcc")]
        elif self.ds:
            if op.startswith(("ds_read", "ds_bpermute", "ds_permute", "ds_swizzle")) or "_rtn" in op:
                self.w = R[0]; self.r = sum(R[1:], [])
            else: self.r = sum(R, [])
        elif self.vmem:
            lds = "lds" in self.mods or "_lds_" in op
            self.ldsdma = lds
            if "load" in op and not lds:
                self.w = R[0]; self.r = sum(R[1:], [])
            else:
                self.r = sum(R, [])
                if lds: self.r += [("s", "m0")]
                if "store" in op and ("x4" in op or "x3" in op):
                    self.storedata = R[0] if op.startswith("buffer") else R[1]
        elif self.salu:
            if op.startswith(("s_cmp", "s_cbranch", "s_branch", "s_waitcnt", "s_nop", "s_barrier", "s_sleep", "s_setprio", "s_endpgm", "s_bitcmp")):
                self.r = sum(R, [])
            else:
                self.w = R[0] if R else []; self.r = sum(R[1:], [])
    def states(self):
        if not self.op: return 0
        if self.op == "s_nop": return int(self.ops[0], 0) + 1
        return 1

def need(p, c):
    n = 0
    pw, cr, cw = set(p.w), set(c.r), set(c.w)
    vw = {x for x in pw if x[0] in "va"}
    sw = {x for x in pw if x[0] == "s"}
    if p.valu:
        if c.mfma and vw & cr: n = max(n, 2)
        if c.op.startswith(("v_readlane", "v_readfirstlane")) and vw & cr: n = max(n, 1)
        if c.op.startswith("v_permlane") and vw & cr: n = max(n, 2)
        if c.valu and any("dpp" in m or "quad_perm" in m or "row_" in m for m in c.mods + [c.op]) and vw & cr: n = max(n, 2)
        if p.trans and c.valu and not c.trans and vw & cr: n = max(n, 1)
        if c.valu and sw & cr: n = max(n, 4 if c.op.startswith(("v_readlane", "v_writelane")) else 2)
        if c.vmem and sw & cr: n = max(n, 5)
        if c.salu and sw & cr and not c.op.startswith("s_cbranch"): n = max(n, 1)
        if any("sdwa" in m or "op_sel:" in m for m in p.mods + [p.op]) and not p.op.startswith("v_pk") and c.valu and vw & (cr | cw): n = max(n, 1)
    if p.mfma:
        big = 12 if p.passes == 8 else 8
        if c.mfma:
            if vw & set(c.srcab): n = max(n, big)
            if vw & set(c.srcc):
                if not (list(p.w) == list(c.srcc) and p.passes == c.passes): n = max(n, big - 2)
            elif vw & cw: n = max(n, big - 2)
        elif (c.valu or c.vmem or c.ds) and vw & (cr | cw): n = max(n, big)
        if c.valu and set(p.srcc) & cw: n = max(n, 7 if p.passes == 8 else 3)
    if p.salu and ("s", "m0") in pw and c.vmem and getattr(c, "ldsdma", False): n = max(n, 1)
    if p.storedata and set(p.storedata) & cw: n = max(n, 2)
    return n

def shortfall(hist, c):
    d = 0; worst = 0
    for p in reversed(hist):
        if d >= 20: break
        if p.op:
            k = need(p, c) - d
            if k > worst: worst = k
            d += p.states()
    return worst

class Asm:
    def __init__(self):
        self.L = []; self.vq = []; self.lq = []
    def __call__(self, s):
        for line in s.strip("\n").split("\n"):
            line = line.strip()
            if line: self.L.append(line)
    def label(self, n): self.L.append(n + ":")
    def vm(self, s, tag=None): self(s); self.vq.append(tag)
    def lg(self, s, tag=None): self(s); self.lq.append(tag)
    def _cnt(self, q, tag):
        idx = [i for i, t in enumerate(q) if t == tag]
        if not idx: return None
        n = len(q) - 1 - idx[-1]; del q[:idx[-1] + 1]; return n
    def wait(self, vm=None, lg=None):
        parts = []
        if vm is not None:
            n = self._cnt(self.vq, vm) if vm != "all" else 0
            if vm == "all": self.vq.clear()
            if n is not None:
                assert n <= 63; parts.append(f"vmcnt({n})")
        if lg is not None:
            n = self._cnt(self.lq, lg) if lg != "all" else 0
            if lg == "all": self.lq.clear()
            if n is not None:
                parts.append(f"lgkmcnt({min(n,15)})")
        if parts: self("s_waitcnt " + " ".join(parts))
    def finish(self, verbose=False):
        ins = [Ins(l) for l in self.L]
        out = []; added = 0
        for c in ins:
            if c.op:
                k = shortfall(out, c)
                if k > 0:
                    if verbose: print("pad", k, "before", c.text)
                    added += k
                    while k > 0:
                        m = min(k, 16); out.append(Ins(f"s_nop {m-1}")); k -= m
            out.append(c)
            if c.op in ("s_branch", "s_endpgm"): out.append(Ins(".cut"))
        out = [o for o in out if o.text != ".cut"]
        lab = {o.label: i for i, o in enumerate(out) if o.label}
        for i, o in enumerate(out):
            if o.op.startswith(("s_branch", "s_cbranch")):
                t = lab[o.ops[0]]
                hist = out[max(0, i - 24):i + 1]
                for c in out[t:t + 24]:
                    if c.op:
                        k = shortfall(hist, c)
                        assert k <= 0, f"hazard across branch {o.text} -> {c.text} short {k}"
                    hist = hist + [c]
                    if c.op in ("s_branch", "s_endpgm"): break
        return "\n".join(("" if (o.label or o.directive) else "  ") + o.text for o in out) + "\n", added

def vr(a, n=1): return f"v{a}" if n == 1 else f"v[{a}:{a+n-1}]"
def sr(a, n=1): return f"s{a}" if n == 1 else f"s[{a}:{a+n-1}]"
```

```python
import sys, math, struct
from asmlib import *

NAME = "concat_heads__softmax_full_mha__ssm_conv_h3__prompt"
def f32(x): return "0x%08x" % struct.unpack("<I", struct.pack("<f", x))[0]

F1, F4, F2, F3 = 0x1000, 0x3000, 0x5000, 0x6000
KVW, OW, UW, YW, STW = 0x100000, 0x600000, 0x800000, 0xA00000, 0xC00000
WSN = 0x1000000
OOB = 0x40000000
WQ, WKV, QX, XR = 0, 28672, 77824, 86272
RED = XR
HC, PB, FLG = 135424, 152064, 160768
LDS = 160832
ARENA = 15360; A_U, A_Y, A_X = 0, 4608, 6656
OST, OT = 0, 32768
sW, sH, sQB, sF = 28, 29, 30, 31
WS = 32
R0, R1, R2, R3 = 36, 40, 44, 48
sT = 52
SPIN = 1 << 16

def srd(a, r, base, n):
    a(f"s_mov_b32 s{r}, s{base}\ns_mov_b32 s{r+1}, s{base+1}\ns_mov_b32 s{r+2}, {n}\ns_mov_b32 s{r+3}, 0x20000")

class Gen:
    def __init__(self, stamps=False, force_fb=False):
        self.a = Asm(); self.stamps = stamps; self.force_fb = force_fb; self.ns = 0; self.uid = 0
    def stamp(self, i):
        if self.stamps:
            self.a(f"s_memtime s[{64+2*i}:{65+2*i}]\ns_waitcnt lgkmcnt(0)"); self.a.lq.clear()
    def dump_stamps(self, role):
        if not self.stamps: return
        a = self.a
        a(f"s_lshl_b32 s52, s2, 3\ns_add_u32 s52, s52, s{sW}\ns_add_u32 s52, s52, {4*role}\ns_lshl_b32 s52, s52, 7\ns_add_u32 s52, s52, {STW}")
        a("v_mov_b32 v2, 0")
        for i in range(16):
            a(f"v_mov_b32 v3, s{64+2*i}\nbuffer_store_dword v3, v2, s[{WS}:{WS+3}], s52 offen offset:{4*i}")
        a("v_mov_b32 v3, s96\nbuffer_store_dword v3, v2, s[32:35], s52 offen offset:64")
        a("s_getreg_b32 s53, hwreg(HW_REG_XCC_ID)\nv_mov_b32 v3, s53\nbuffer_store_dword v3, v2, s[32:35], s52 offen offset:68")
    def poll(self, vaddr, vtmp, sleep=0):
        a = self.a; self.uid += 1; L = f"L_poll{self.uid}"
        a(f"s_mov_b32 s63, {SPIN}")
        a.label(L)
        if sleep: a(f"s_sleep {sleep}")
        a(f"""buffer_load_dword v{vtmp}, v{vaddr}, s[{WS}:{WS+3}], 0 offen sc1
s_sub_u32 s63, s63, 1
s_cbranch_scc1 {L}_x
s_waitcnt vmcnt(0)
v_cmp_ne_u32 vcc, s{sF}, v{vtmp}
s_cbranch_vccnz {L}""")
        a.label(L + "_x"); a.vq.clear()
    def lane0_addr(self, vdst, soff):
        self.a(f"v_mov_b32 v{vdst}, s{soff}\nv_cmp_eq_u32 vcc, 0, v1\nv_mov_b32 v255, {OOB}\nv_cndmask_b32 v{vdst}, v255, v{vdst}, vcc")

    def entry(self):
        a = self.a
        a(f"""s_cmp_ge_u32 s2, 256
s_cbranch_scc1 L_end
s_getpc_b64 s[60:61]
s_load_dwordx16 s[4:19], s[0:1], 0
s_load_dwordx8 s[20:27], s[0:1], 64
v_lshlrev_b32 v2, 7, v0
v_min_u32 v2, CODE_BYTES, v2""")
        a.vm("global_load_dword v254, v2, s[60:61]", "pf")
        if self.stamps: a("s_memrealtime s[96:97]\ns_memtime s[64:65]")
        a(f"""v_lshrrev_b32 v3, 6, v0
v_and_b32 v1, 63, v0
v_readfirstlane_b32 s3, v3
s_and_b32 s52, s2, 1
s_lshl_b32 s52, s52, 3
s_bfe_u32 s53, s2, 0x30003
s_add_u32 s{sH}, s52, s53
s_bfe_u32 s52, s2, 0x20001
s_lshl_b32 s52, s52, 2
s_lshr_b32 s53, s2, 6
s_add_u32 s{sQB}, s52, s53
s_and_b32 s{sW}, s3, 3
s_mov_b32 s{WS+2}, {WSN}
s_mov_b32 s{WS+3}, 0x20000
s_mov_b32 s{R0+3}, 0x20000
s_cmp_ge_u32 s3, 4
s_cbranch_scc1 L_B""")

    def roleA(self):
        a = self.a
        XF, AK, AV, WB = 16, 128, 144, 208
        KV, Q, O, S, P = 192, 160, 16, 80, 112
        sXB, sCC, sM0 = 52, 53, 54
        a(f"""v_lshrrev_b32 v6, 3, v1
v_lshrrev_b32 v7, 4, v1
v_and_b32 v8, 7, v1
v_xor_b32 v8, v8, v7
v_mul_u32_u24 v6, 896, v6
v_lshl_add_u32 v2, v8, 4, v6
v_xor_b32 v3, 64, v2
v_add_u32 v3, 6144, v3
v_add_u32 v4, 12288, v2
v_add_u32 v5, 12288, v3
s_lshl_b32 s{sXB}, s{sQB}, 2
s_add_u32 s{sXB}, s{sXB}, s{sW}
s_mul_i32 s{sXB}, s{sXB}, 28672
s_and_b32 s55, s{sH}, 7
s_cmp_eq_u32 s55, 7
s_cselect_b32 s55, 3, s55
s_mov_b32 s{sCC}, s55
s_mul_i32 s{sM0}, s{sW}, 12288
s_add_u32 s{sM0}, s{sM0}, {XR}
s_mov_b32 s{R0+2}, 1835008
s_waitcnt lgkmcnt(0)
s_mov_b32 s{R0}, s4
s_mov_b32 s{R0+1}, s5""")
        def xdma(i):
            a(f"s_add_u32 m0, s{sM0}, {(i%3)*4096}\ns_lshl_b32 s56, s{sCC}, 7\ns_add_u32 s56, s56, s{sXB}")
            for p in range(4):
                a.vm(f"buffer_load_dwordx4 v{2+p}, s[{R0}:{R0+3}], s56 offen offset:{1024*p} lds", f"x{i}")
            a(f"s_add_u32 s{sCC}, s{sCC}, 1\ns_cmp_eq_u32 s{sCC}, 7\ns_cselect_b32 s{sCC}, 0, s{sCC}")
        xdma(0)
        a(f"s_load_dword s{sF}, s[26:27], 0\ns_mov_b32 s{WS}, s26\ns_mov_b32 s{WS+1}, s27")
        xdma(1); xdma(2)
        a(f"""v_and_b32 v12, 31, v1
v_lshrrev_b32 v13, 5, v1
v_bfe_u32 v14, v1, 1, 3
v_xor_b32 v14, v14, v13
v_lshlrev_b32 v14, 4, v14
v_lshl_add_u32 v14, v12, 7, v14
v_add_u32 v6, s{sM0}, v14
v_xor_b32 v7, 32, v6
v_xor_b32 v8, 64, v6
v_xor_b32 v9, 96, v6
v_bfe_u32 v14, v1, 2, 2
v_lshl_add_u32 v14, v13, 3, v14
v_lshlrev_b32 v14, 6, v14
v_bfe_u32 v15, v1, 4, 1
v_lshl_add_u32 v14, v15, 5, v14
v_and_b32 v15, 3, v1
s_and_b32 s56, s{sH}, 1
v_add_u32 v15, s56, v15
v_lshl_add_u32 v10, v15, 3, v14
v_cmp_gt_u32 s[58:59], 28, v12
v_cmp_eq_u32 vcc, 28, v12
v_mov_b32 v14, 0x3f803f80
v_cndmask_b32 v12, 0, v14, vcc
v_cmp_eq_u32 s[60:61], 0, v13
v_lshlrev_b32 v13, 4, v1
s_mov_b32 s57, s55
s_waitcnt lgkmcnt(0)
s_add_u32 s{sF}, s{sF}, 0x9e3779b9""")
        self.stamp(1)
        a("s_barrier")
        self.stamp(2)
        def wbase(shift, base):
            a(f"s_lshl_b32 s56, s57, {shift}\ns_add_u32 s56, s56, {base}\nv_add_u32 v11, s56, v10\ns_add_u32 s57, s57, 1\ns_cmp_eq_u32 s57, 7\ns_cselect_b32 s57, 0, s57")
        def reads_kv(s):
            i, kk = divmod(s, 4)
            if kk == 0:
                wbase(13, WKV)
                a.wait(vm=f"x{i}")
                for k2 in range(4):
                    a.lg(f"ds_read_b128 {vr(XF+4*(s+k2),4)}, v{6+k2} offset:{(i%3)*4096}", f"xr{i}")
            b = WB + 8 * (s % 4)
            return [(f"ds_read_b64_tr_b16 {vr(b+2*n,2)}, v11 offset:{kk*2048+(n>>1)*1024+(n&1)*256}", f"w{s}") for n in range(4)]
        for s in (0, 1):
            for t, g in reads_kv(s): a.lg(t, g)
        for s in range(28):
            a.wait(lg=f"w{s}")
            b = WB + 8 * (s % 4); x = vr(XF + 4 * s, 4)
            a(f"v_mfma_f32_32x32x16_bf16 {vr(AK,16)}, {vr(b,4)}, {x}, {vr(AK,16) if s else 0}")
            if s % 4 == 0 and s // 4 + 3 < 7:
                xdma(s // 4 + 3)
                if s // 4 + 3 == 6: a("s_barrier")
            rd = reads_kv(s + 2) if s + 2 < 28 else []
            for t, g in rd[:2]: a.lg(t, g)
            a(f"v_mfma_f32_32x32x16_bf16 {vr(AV,16)}, {x}, {vr(b+4,4)}, {vr(AV,16) if s else 0}")
            for t, g in rd[2:]: a.lg(t, g)
        self.stamp(3)
        a(f"""s_lshl_b32 s52, s{sH}, 2
s_add_u32 s52, s52, s{sW}
s_lshl_b32 s53, s52, 4
s_add_u32 s53, s53, s{sQB}
s_lshl_b32 s53, s53, 12
s_add_u32 s53, s53, {KVW}
s_lshl_b32 s54, s52, 7
s_add_u32 s54, s54, {F1}
s_lshl_b32 s56, s{sQB}, 2
s_add_u32 s56, s56, s54
s_mov_b32 s57, s55""")
        for i in range(8): a(f"v_cvt_pk_bf16_f32 v{KV+i}, v{AK+2*i}, v{AK+2*i+1}")
        a(f"v_cndmask_b32 v{KV+6}, 0, v{KV+6}, s[60:61]\nv_cndmask_b32 v{KV+7}, 0, v{KV+7}, s[60:61]")
        for i in range(2): a.vm(f"buffer_store_dwordx4 {vr(KV+4*i,4)}, v13, s[{WS}:{WS+3}], s53 offen offset:{1024*i} sc1", "kv")
        for i in range(8):
            a(f"v_cvt_pk_bf16_f32 v{KV+8+i}, v{AV+2*i}, v{AV+2*i+1}")
        for i in range(8):
            a(f"v_cndmask_b32 v{KV+8+i}, v12, v{KV+8+i}, s[58:59]")
        for i in range(2, 4): a.vm(f"buffer_store_dwordx4 {vr(KV+4*i,4)}, v13, s[{WS}:{WS+3}], s53 offen offset:{1024*i} sc1", "kv")
        self.lane0_addr(2, 56)
        a(f"v_mov_b32 v3, s{sF}\nv_and_b32 v4, 15, v1\nv_lshl_add_u32 v4, v4, 2, s54")
        self.stamp(4)
        a("s_barrier")
        self.stamp(5)
        def reads_q(s):
            i, kk = divmod(s, 4)
            if kk == 0: wbase(12, WQ)
            b = WB + 4 * (s % 8)
            for n in range(2): a.lg(f"ds_read_b64_tr_b16 {vr(b+2*n,2)}, v11 offset:{kk*1024+n*256}", f"w{s}")
        for s in range(4): reads_q(s)
        for s in range(28):
            a.wait(lg=f"w{s}")
            a(f"v_mfma_f32_32x32x16_bf16 {vr(AK,16)}, {vr(WB+4*(s%8),4)}, {vr(XF+4*s,4)}, {vr(AK,16) if s else 0}")
            if s + 4 < 28: reads_q(s + 4)
            if s == 20:
                a.wait(vm="all")
                a.vm(f"buffer_store_dword v3, v2, s[{WS}:{WS+3}], 0 offen sc1", "fl")
        self.stamp(6)
        c = math.log2(math.e) / math.sqrt(28.0)
        a(f"""s_mov_b32 s56, {f32(c)}
s_lshl_b32 s57, s{sW}, 11
s_add_u32 s57, s57, {QX}
v_add_u32 v5, s57, v13""")
        for g in range(3):
            a(f"s_add_u32 s57, s{sW}, {g+1}\ns_and_b32 s57, s57, 3\ns_lshl_b32 s57, s57, 11\ns_add_u32 s57, s57, {QX}\nv_add_u32 v{6+g}, s57, v13")
        for i in range(16): a(f"v_mul_f32 v{AK+i}, s56, v{AK+i}")
        for i in range(8): a(f"v_cvt_pk_bf16_f32 v{Q+24+i}, v{AK+2*i}, v{AK+2*i+1}")
        a(f"v_cndmask_b32 v{Q+30}, 0, v{Q+30}, s[60:61]\nv_cndmask_b32 v{Q+31}, 0, v{Q+31}, s[60:61]")
        a(f"ds_write_b128 v5, {vr(Q+24,4)}\nds_write_b128 v5, {vr(Q+28,4)} offset:1024\ns_waitcnt lgkmcnt(0)\ns_barrier")
        for g in range(3):
            a(f"ds_read_b128 {vr(Q+8*g,4)}, v{6+g}\nds_read_b128 {vr(Q+8*g+4,4)}, v{6+g} offset:1024")
        for r in list(range(O, O + 64)) + list(range(S + 28, S + 32)) + list(range(P, P + 8)) + list(range(KV + 56, KV + 64)):
            a(f"v_mov_b32 v{r}, 0")
        self.stamp(7)
        self.poll(4, 14)
        self.stamp(8)
        a(f"s_lshl_b32 s52, s52, 16\ns_add_u32 s52, s52, {KVW}\nv_add_u32 v5, s52, v13\ns_lshl_b32 s57, s{sQB}, 12")
        adv = ["s_add_u32 s57, s57, 4096", "s_and_b32 s57, s57, 0xffff"]
        ld = lambda buf, i: f"buffer_load_dwordx4 {vr(KV+16*buf+4*i,4)}, v5, s[{WS}:{WS+3}], s57 offen offset:{1024*i} sc1"
        for t in (1, 2):
            a("\n".join(adv))
            for i in range(4): a(ld(t, i))
        a("\n".join(adv))
        a(f"""s_waitcnt lgkmcnt(0)
v_mfma_f32_32x32x16_bf16 {vr(S,16)}, {vr(KV,4)}, {vr(Q,4)}, 0
s_mov_b32 s62, 4
v_mfma_f32_32x32x16_bf16 {vr(S,16)}, {vr(KV+4,4)}, {vr(Q+4,4)}, {vr(S,16)}
s_nop 8""")
        a(".p2align 6"); a.label("L_att")
        def slot(u):
            t, g = divmod(u, 4)
            tp, gp = divmod((u - 1) % 16, 4); tn, gn = divmod((u + 1) % 16, 4)
            Sc, So = S + 16 * (u & 1), S + 16 * ((u + 1) & 1)
            cv = lambda i, s: f"v_cvt_pk_bf16_f32 v{P+i}, v{s+2*i}, v{s+2*i+1}"
            ex = lambda r: "\n".join(f"v_exp_f32 v{Sc+r+i}, v{Sc+r+i}" for i in range(4))
            Op = vr(O + 16 * gp, 16)
            a(f"v_mfma_f32_32x32x16_bf16 {Op}, {vr(KV+16*tp+8,4)}, {vr(P,4)}, {Op}")
            if g == 3: a("s_waitcnt vmcnt(7)")
            if g == 0 and u: a(adv[1])
            a(cv(6, So)); a(cv(7, So)); a(ex(0))
            a(f"v_mfma_f32_32x32x16_bf16 {vr(So,16)}, {vr(KV+16*tn,4)}, {vr(Q+8*gn,4)}, 0")
            if u == 15: a("s_sub_u32 s62, s62, 1")
            a(cv(0, Sc)); a(cv(1, Sc)); a(ex(4))
            a(f"v_mfma_f32_32x32x16_bf16 {vr(So,16)}, {vr(KV+16*tn+4,4)}, {vr(Q+8*gn+4,4)}, {vr(So,16)}")
            a(ld((t + 3) % 4, g))
            a(cv(2, Sc)); a(cv(3, Sc)); a(ex(8))
            a(f"v_mfma_f32_32x32x16_bf16 {Op}, {vr(KV+16*tp+12,4)}, {vr(P+4,4)}, {Op}")
            if g == 3: a(adv[0])
            a(cv(4, Sc)); a(cv(5, Sc)); a(ex(12))
        for u in range(16): slot(u)
        a(adv[1])
        a("s_cmp_lg_u32 s62, 0\ns_cbranch_scc1 L_att")
        O3 = vr(O + 48, 16)
        a(f"""v_mfma_f32_32x32x16_bf16 {O3}, {vr(KV+56,4)}, {vr(P,4)}, {O3}
v_cvt_pk_bf16_f32 v{P+6}, v{S+28}, v{S+29}
v_cvt_pk_bf16_f32 v{P+7}, v{S+30}, v{S+31}""")
        self.stamp(9)
        for g in range(3):
            a(f"s_add_u32 s57, s{sW}, {g+1}\ns_and_b32 s57, s57, 3\ns_mul_i32 s57, s57, 12288\ns_add_u32 s57, s57, {RED+4096*g}\nv_add_u32 v{6+g}, s57, v13")
            if g == 0: a(f"v_mfma_f32_32x32x16_bf16 {O3}, {vr(KV+60,4)}, {vr(P+4,4)}, {O3}")
        for g in range(3):
            for i in range(4): a(f"ds_write_b128 v{6+g}, {vr(O+16*g+4*i,4)} offset:{1024*i}")
        a(f"""s_mul_i32 s57, s{sW}, 12288
s_add_u32 s57, s57, {RED}
v_add_u32 v6, s57, v13
s_lshl_b32 s52, s{sQB}, 2
s_add_u32 s52, s52, s{sW}
s_lshl_b32 s53, s52, 4
s_add_u32 s53, s53, s{sH}
s_lshl_b32 s53, s53, 11
s_add_u32 s53, s53, {OW}
s_lshl_b32 s54, s52, 5
s_add_u32 s54, s54, s{sH}
s_lshl_b32 s54, s54, 2
s_add_u32 s54, s54, {F4}""")
        self.lane0_addr(2, 54)
        a("s_waitcnt lgkmcnt(0)")
        self.stamp(10)
        a("s_barrier")
        self.stamp(11)
        for n in range(12): a.lg(f"ds_read_b128 {vr(O+4*n,4)}, v6 offset:{1024*n}", f"r{n//4}")
        Of = O + 48
        for g in range(3):
            a.wait(lg=f"r{g}")
            for i in range(8): a(f"v_pk_add_f32 {vr(Of+2*i,2)}, {vr(Of+2*i,2)}, {vr(O+16*g+2*i,2)}")
        a(f"v_mov_b32 v8, v{Of+12}\nv_mov_b32 v9, v{Of+12}")
        a(f"v_pk_add_f32 v[16:17], {vr(Of,2)}, {vr(Of+2,2)}")
        a("v_permlane32_swap_b32 v8, v9")
        for i in range(2, 8): a(f"v_pk_add_f32 v[16:17], v[16:17], {vr(Of+2*i,2)}")
        a(f"""v_add_f32 v16, v16, v17
v_mov_b32 v17, 0x1f8
s_mov_b32 s56, {f32(2.0**-60)}
s_mov_b32 s57, {f32(2.0**40)}
v_cmp_class_f32 vcc, v16, v17
v_cmp_le_f32 s[58:59], s56, v9
v_cmp_ge_f32 s[62:63], s57, v9
s_and_b64 vcc, vcc, s[58:59]
s_and_b64 vcc, vcc, s[62:63]
s_cmp_eq_u64 vcc, -1""")
        a("s_cbranch_scc0 L_fb" if not self.force_fb else "s_branch L_fb")
        a.label("L_norm")
        a("v_rcp_f32 v9, v9")
        for i in range(16): a(f"v_mul_f32 v{Of+i}, v9, v{Of+i}")
        for i in range(8): a(f"v_cvt_pk_bf16_f32 v{P+i}, v{Of+2*i}, v{Of+2*i+1}")
        a(f"v_cndmask_b32 v{P+6}, 0, v{P+6}, s[60:61]\nv_cndmask_b32 v{P+7}, 0, v{P+7}, s[60:61]")
        for i in range(2): a(f"buffer_store_dwordx4 {vr(P+4*i,4)}, v13, s[{WS}:{WS+3}], s53 offen offset:{1024*i} sc1")
        self.stamp(12)
        a(f"s_waitcnt vmcnt(0)\nbuffer_store_dword v3, v2, s[{WS}:{WS+3}], 0 offen sc1")
        self.stamp(13)
        self.dump_stamps(0)
        a("s_endpgm")
        self.fb = (KV, Q + 24, Of, S, P)

    def fallback(self):
        a = self.a; KV, Qo, Of, S, P = self.fb
        a.label("L_fb")
        a(f"""s_waitcnt vmcnt(0)
s_lshl_b32 s52, s{sH}, 18
s_add_u32 s52, s52, {KVW}
s_add_u32 s56, s52, 0x40000
s_mov_b32 s57, s52
v_mov_b32 v8, 0xff800000""")
        qk = f"""v_mfma_f32_32x32x16_bf16 {vr(S,16)}, {vr(KV,4)}, {vr(Qo,4)}, 0
v_mfma_f32_32x32x16_bf16 {vr(S,16)}, {vr(KV+4,4)}, {vr(Qo+4,4)}, {vr(S,16)}"""
        ld = lambda i: f"buffer_load_dwordx4 {vr(KV+4*i,4)}, v13, s[{WS}:{WS+3}], s57 offen offset:{1024*i} sc1"
        a.label("L_fb1")
        a(ld(0)); a(ld(1)); a("s_waitcnt vmcnt(0)"); a(qk)
        for i in range(8): a(f"v_max3_f32 v8, v8, v{S+2*i}, v{S+2*i+1}")
        a("s_add_u32 s57, s57, 4096\ns_cmp_lt_u32 s57, s56\ns_cbranch_scc1 L_fb1")
        a("v_mov_b32 v9, v8\nv_permlane32_swap_b32 v8, v9\nv_max_f32 v8, v8, v9\ns_mov_b32 s57, s52")
        for i in range(16): a(f"v_mov_b32 v{Of+i}, 0")
        a.label("L_fb2")
        for i in range(4): a(ld(i))
        a("s_waitcnt vmcnt(0)"); a(qk)
        for i in range(16): a(f"v_sub_f32 v{S+i}, v{S+i}, v8")
        for i in range(16): a(f"v_exp_f32 v{S+i}, v{S+i}")
        for i in range(8): a(f"v_cvt_pk_bf16_f32 v{P+i}, v{S+2*i}, v{S+2*i+1}")
        a(f"""v_mfma_f32_32x32x16_bf16 {vr(Of,16)}, {vr(KV+8,4)}, {vr(P,4)}, {vr(Of,16)}
v_mfma_f32_32x32x16_bf16 {vr(Of,16)}, {vr(KV+12,4)}, {vr(P+4,4)}, {vr(Of,16)}
s_add_u32 s57, s57, 4096
s_cmp_lt_u32 s57, s56
s_cbranch_scc1 L_fb2
s_nop 15
v_mov_b32 v8, v{Of+12}
v_mov_b32 v9, v{Of+12}
s_nop 1
v_permlane32_swap_b32 v8, v9
s_nop 1
s_branch L_norm""")

    def roleB(self):
        a = self.a
        a(".p2align 6"); a.label("L_B"); a.vq = ["pf"]; a.lq = []
        sWO, sI = 52, 53
        a(f"""v_lshrrev_b32 v4, 2, v1
v_and_b32 v5, 3, v1
v_mul_u32_u24 v2, 2688, v4
v_lshl_add_u32 v2, v5, 4, v2
v_add_u32 v3, 768, v2
v_add_u32 v6, 896, v2
s_mul_i32 s{sWO}, s{sH}, 56
s_and_b32 s{sWO}, s{sWO}, 0xfff0
s_mul_i32 s54, s{sW}, 43008
s_add_u32 s{sWO}, s{sWO}, s54
s_and_b32 s{sI}, s{sQB}, 3
s_lshl_b32 s{sI}, s{sI}, 1
s_lshl_b32 s55, s{sW}, 11
s_add_u32 s55, s55, {WKV}
s_mov_b32 s{R0+2}, 1204224
s_waitcnt lgkmcnt(0)
s_mov_b32 s{R0}, s6
s_mov_b32 s{R0+1}, s7""")
        nxt = f"s_add_u32 s{sI}, s{sI}, 1\ns_cmp_eq_u32 s{sI}, 7\ns_cselect_b32 s{sI}, 0, s{sI}"
        for i in range(7):
            a(f"s_lshl_b32 s56, s{sI}, 13\ns_add_u32 m0, s56, s55\ns_mul_i32 s56, s{sI}, 172032\ns_add_u32 s56, s56, s{sWO}")
            a.vm(f"buffer_load_dwordx4 v6, s[{R0}:{R0+3}], s56 offen lds", "w")
            a.vm(f"buffer_load_dwordx4 v3, s[{R0}:{R0+3}], s56 offen offset:1024 lds", "w")
            a(nxt)
            if i == 0: a(f"s_load_dword s{sF}, s[26:27], 0\ns_mov_b32 s{WS}, s26\ns_mov_b32 s{WS+1}, s27")
        a(f"""s_mul_i32 s56, s{sW}, 4160
s_add_u32 s56, s56, {HC}
v_and_b32 v7, 7, v1
v_lshl_add_u32 v7, v7, 2, s56
v_mov_b32 v8, 0
v_mov_b32 v9, {FLG}
v_lshl_add_u32 v9, v5, 2, v9
ds_write_b32 v7, v8
ds_write_b32 v9, v8
v_lshlrev_b32 v13, 4, v1
s_and_b32 s57, s{sW}, 1
s_lshr_b32 s58, s{sW}, 1
s_lshl_b32 s55, s{sW}, 10""")
        a(f"""s_and_b32 s59, s2, 31
s_lshl_b32 s59, s59, 1
s_add_u32 s59, s59, s57
s_lshr_b32 s60, s2, 5
s_lshl_b32 s60, s60, 1
s_add_u32 s60, s60, s58
s_mul_i32 s61, s59, 28672
s_lshl_b32 s62, s60, 6
s_add_u32 s61, s61, s62
v_mul_u32_u24 v10, 1792, v4
v_lshl_add_u32 v10, v5, 4, v10
v_add_u32 v10, s61, v10""")
        for jj in range(3): a(f"v_subrev_u32 v{14+jj}, {896*(3-jj)}, v10")
        srd(a, R1, 12, 1835008); srd(a, R2, 14, 1835008)
        a(f"""s_lshl_b32 s61, s2, 1
s_add_u32 s61, s61, s58
s_lshl_b32 s61, s61, 12
s_add_u32 s{R3}, s18, s61
s_addc_u32 s{R3+1}, s19, 0
s_mov_b32 s{R3+2}, 4096
s_mov_b32 s{R3+3}, 0x20000
s_lshl_b32 s61, s57, 11
v_add_u32 v11, s61, v13
v_subrev_u32 v12, 4, v11
v_add_u32 v17, 1020, v11
s_waitcnt vmcnt(0) lgkmcnt(0)
s_add_u32 s{sF}, s{sF}, 0x9e3779b9""")
        a.vq.clear()
        self.stamp(1)
        a("s_barrier\ns_barrier")
        self.stamp(2)
        for i in range(7):
            a(f"s_lshl_b32 s56, s{sI}, 12\ns_add_u32 m0, s56, s55\ns_mul_i32 s56, s{sI}, 172032\ns_add_u32 s56, s56, s{sWO}")
            a.vm(f"buffer_load_dwordx4 v2, s[{R0}:{R0+3}], s56 offen lds", "wq")
            a(nxt)
        a("s_cmp_lt_u32 s2, 224\ns_cbranch_scc1 L_ssm\ns_waitcnt vmcnt(0)\ns_barrier\ns_barrier\ns_branch L_wo")
        a.label("L_ssm")
        KR, VR, HR, WT, KF, U = 32, 52, 60, 72, 104, 20
        a(f"""s_mul_i32 s54, s{sW}, 2176
s_add_u32 s54, s54, {PB}
s_mov_b32 m0, s54
s_lshl_b32 s56, s60, 8
v_lshl_add_u32 v18, v1, 2, s56""")
        a.vm("global_load_lds_dword v18, s[16:17]", "sk")
        for jj in range(3): a.vm(f"buffer_load_dwordx4 {vr(KR+4*jj,4)}, v{14+jj}, s[{R1}:{R1+3}], 0 offen", "k")
        for jj in range(2): a.vm(f"buffer_load_dwordx4 {vr(KR+12+4*jj,4)}, v10, s[{R1}:{R1+3}], 0 offen offset:{896*jj}", "k")
        for jj in range(2): a.vm(f"buffer_load_dwordx4 {vr(VR+4*jj,4)}, v10, s[{R2}:{R2+3}], 0 offen offset:{896*jj}", "v")
        for i in range(2):
            a.vm(f"buffer_load_dwordx4 {vr(HR+4*i,4)}, v11, s[{R3}:{R3+3}], 0 offen offset:{1024*i}", "h")
            a.vm(f"buffer_load_dword v{HR+8+i}, v{(12,17)[i]}, s[{R3}:{R3+3}], 0 offen", "h")
        a(f"v_lshl_add_u32 v18, v5, 6, s54\ns_mov_b32 s61, 0xffff0000")
        a.wait(vm="wq")
        self.stamp(3)
        a("s_barrier")
        a.wait(vm="sk")
        for i in range(4): a.lg(f"ds_read_b128 {vr(KF+4*i,4)}, v18 offset:{16*i}", "sk")
        a(f"""v_mul_u32_u24 v19, 544, v5
v_xor_b32 v14, 3, v4
v_lshl_add_u32 v15, v4, 2, v19
v_add_u32 v15, s54, v15
v_lshl_add_u32 v19, v14, 2, v19
v_add_u32 v19, s54, v19
v_lshrrev_b32 v14, 5, v1
v_mul_u32_u24 v14, 544, v14
v_bfe_u32 v16, v1, 2, 3
v_lshl_add_u32 v14, v16, 6, v14
v_lshl_add_u32 v14, v5, 4, v14
v_add_u32 v14, s54, v14
v_lshrrev_b32 v16, 3, v1
v_lshlrev_b32 v16, 13, v16
v_and_b32 v12, 7, v1
v_lshl_add_u32 v16, v12, 4, v16
s_lshl_b32 s56, s60, 17
s_lshl_b32 s62, s59, 7
s_add_u32 s56, s56, s62
v_add_u32 v16, s56, v16""")
        a.wait(lg="sk")
        for j in range(8):
            a(f"v_lshlrev_b32 v{WT+j}, 16, v{KF+2*j}\nv_and_b32 v{WT+8+j}, s61, v{KF+2*j}\nv_lshlrev_b32 v{WT+16+j}, 16, v{KF+2*j+1}\nv_and_b32 v{WT+24+j}, s61, v{KF+2*j+1}")
        a.wait(vm="k")
        for r in range(5):
            for d in range(4):
                a(f"v_lshlrev_b32 v{KF+8*r+2*d}, 16, v{KR+4*r+d}\nv_and_b32 v{KF+8*r+2*d+1}, s61, v{KR+4*r+d}")
        AC = 144; VF = 160
        for t in range(2):
            for d in range(4):
                acc = vr(AC + 8 * t + 2 * d, 2)
                for tap in (3, 2, 1, 0):
                    kk = vr(KF + 8 * (t + 3 - tap) + 2 * d, 2); ww = vr(WT + 8 * tap + 2 * d, 2)
                    a(f"v_pk_mul_f32 {acc}, {kk}, {ww}" if tap == 3 else f"v_pk_fma_f32 {acc}, {kk}, {ww}, {acc}")
        a.wait(vm="v")
        for t in range(2):
            for d in range(4):
                a(f"v_lshlrev_b32 v{VF+8*t+2*d}, 16, v{VR+4*t+d}\nv_and_b32 v{VF+8*t+2*d+1}, s61, v{VR+4*t+d}")
        for i in range(8): a(f"v_pk_mul_f32 {vr(AC+2*i,2)}, {vr(AC+2*i,2)}, {vr(VF+2*i,2)}")
        for j in range(8):
            a(f"v_cvt_pk_bf16_f32 v{U+j}, v{AC+8+j}, v{AC+j}")
        for j in range(8): a.lg(f"ds_write_b32 v19, v{U+j} offset:{64*j}", "uw")
        for i in range(2): a.lg(f"ds_read_b128 {vr(KR+4*i,4)}, v14 offset:{1088*i}", f"ur{i}")
        a(f"s_mul_i32 s56, s58, 8320\ns_add_u32 s56, s56, {HC+32}\nv_add_u32 v11, s56, v11\ns_mov_b32 s62, {UW}\ns_mov_b32 s63, {UW+65536}")
        for i in range(2):
            a.wait(lg=f"ur{i}")
            a.vm(f"buffer_store_dwordx4 {vr(KR+4*i,4)}, v16, s[{WS}:{WS+3}], s{62+i} offen sc1", "us")
        a.wait(vm="h")
        for i in range(2):
            a(f"ds_write_b128 v11, {vr(HR+4*i,4)} offset:{1024*i}")
            for d in range(4):
                a(f"v_alignbit_b32 v{WT+4*i+d}, v{HR+4*i+d}, v{HR+4*i+d-1 if d else HR+8+i}, 16")
            a(f"ds_write_b128 v11, {vr(WT+4*i,4)} offset:{4160+1024*i}")
        a(f"s_lshl_b32 s56, s60, 6\ns_add_u32 s56, s56, s59\ns_lshl_b32 s56, s56, 2\ns_add_u32 s56, s56, {F2}")
        self.lane0_addr(2, 56)
        a(f"v_mov_b32 v3, s{sF}\ns_waitcnt lgkmcnt(0)")
        self.stamp(4)
        a("s_barrier")
        self.stamp(5)
        a(f"s_waitcnt vmcnt(0)\nbuffer_store_dword v3, v2, s[{WS}:{WS+3}], 0 offen sc1"); a.vq.clear(); a.lq.clear()
        a(f"""s_mul_i32 s54, s{sW}, {ARENA}
v_lshl_add_u32 v6, v1, 3, s54
v_mov_b32 v8, 0
v_mov_b32 v9, 0
ds_write_b64 v6, v[8:9]
s_lshr_b32 s56, s2, 4
s_lshl_b32 s56, s56, 8
s_add_u32 s56, s56, {F2}
v_lshl_add_u32 v6, v1, 2, s56
v_lshlrev_b32 v7, 7, v4
v_lshl_add_u32 v7, v5, 4, v7
s_lshl_b32 s56, s2, 13
s_lshl_b32 s62, s58, 6
s_add_u32 s56, s56, s62
v_add_u32 v7, s56, v7
v_and_b32 v8, 15, v1
v_lshrrev_b32 v9, 4, v1
v_lshlrev_b32 v11, 5, v8
v_lshlrev_b32 v12, 4, v9
v_sub_u32 v17, v11, v12
s_lshl_b32 s56, s57, 8
s_sub_u32 s62, s54, s56
s_add_u32 s62, s62, {512+16-192}
v_add_u32 v17, s62, v17
v_lshl_add_u32 v18, v9, 3, v11
s_add_u32 s62, s54, {A_Y}
v_add_u32 v18, s62, v18
v_lshrrev_b32 v11, 1, v8
v_lshl_add_u32 v11, v11, 2, v12
v_and_b32 v8, 1, v8
v_xor_b32 v8, 1, v8
v_mul_u32_u24 v8, 4160, v8
v_add_u32 v11, v11, v8
s_mul_i32 s62, s58, 8320
s_add_u32 s62, s62, s56
s_add_u32 s62, s62, {HC+4}
v_add_u32 v28, s62, v11
v_add_u32 v29, 1024, v28
v_add_u32 v30, 2048, v28
v_add_u32 v31, 3072, v28""")
        TB, XB, ACC = 64, 128, 192
        def rdT(rho):
            o = []
            for m in range(8):
                b = TB + 32 * (rho & 1) + 4 * m; d = (m & 1) * 128 + 16 * rho
                o.append(f"ds_read2_b32 {vr(b,2)}, v{28+(m>>1)} offset0:{d} offset1:{d+1}")
                o.append(f"ds_read2_b32 {vr(b+2,2)}, v{28+(m>>1)} offset0:{d+2} offset1:{d+3}")
            return o
        def rdX(rho):
            return [f"ds_read_b128 {vr(XB+32*(rho&1)+4*n,4)}, v17 offset:{512*n-64*rho+192}" for n in range(8)]
        for t in rdT(0): a(t)
        self.poll(6, 12, sleep=2)
        self.stamp(6)
        a(f"s_add_u32 m0, s54, 512\ns_mov_b32 s56, {UW}")
        for i in range(4):
            a(f"buffer_load_dwordx4 v7, s[{WS}:{WS+3}], s56 offen offset:{1024*i} sc1 lds\ns_add_u32 s56, s56, 1024")
        a("s_waitcnt vmcnt(0)")
        for t in rdX(0): a(t)
        for rho in range(4):
            a("s_waitcnt lgkmcnt(0)")
            pre = (rdX(rho + 1) + rdT(rho + 1)) if rho < 3 else []
            for m in range(8):
                for c in range(7, m - 1, -1):
                    acc = vr(ACC + 4 * c, 4)
                    a(f"v_mfma_f32_16x16x32_bf16 {acc}, {vr(TB+32*(rho&1)+4*m,4)}, {vr(XB+32*(rho&1)+4*(c-m),4)}, {acc if (rho or m) else 0}")
                    if pre: a(pre.pop(0))
        self.stamp(7)
        a(f"""s_xor_b32 s56, s{sW}, 1
s_mul_i32 s62, s56, {ARENA}
s_add_u32 s62, s62, {A_X}
v_add_u32 v8, s62, v13
s_lshl_b32 s56, s56, 2
s_add_u32 s56, s56, {FLG}
v_mov_b32 v9, s56
v_xor_b32 v11, 4, v9
v_add_u32 v12, s54, v13
s_cmp_eq_u32 s57, 0
s_cbranch_scc1 L_nosw""")
        for i in range(16): a(f"v_swap_b32 v{ACC+i}, v{ACC+16+i}")
        a.label("L_nosw")
        for i in range(4): a(f"ds_write_b128 v8, {vr(ACC+16+4*i,4)} offset:{1024*i}")
        a(f"ds_write_b32 v11, v9\ns_mov_b32 s63, {SPIN}")
        a.label("L_pair")
        a("""ds_read_b32 v8, v9
s_sub_u32 s63, s63, 1
s_cbranch_scc1 L_pair_x
s_waitcnt lgkmcnt(0)
v_cmp_eq_u32 vcc, 0, v8
s_cbranch_vccnz L_pair""")
        a.label("L_pair_x")
        for i in range(4): a.lg(f"ds_read_b128 {vr(TB+4*i,4)}, v12 offset:{A_X+1024*i}", f"e{i}")
        for i in range(4):
            a.wait(lg=f"e{i}")
            a(f"""v_pk_add_f32 {vr(ACC+4*i,2)}, {vr(ACC+4*i,2)}, {vr(TB+4*i,2)}
v_pk_add_f32 {vr(ACC+4*i+2,2)}, {vr(ACC+4*i+2,2)}, {vr(TB+4*i+2,2)}
v_cvt_pk_bf16_f32 v{XB+2*i}, v{ACC+4*i}, v{ACC+4*i+1}
v_cvt_pk_bf16_f32 v{XB+2*i+1}, v{ACC+4*i+2}, v{ACC+4*i+3}""")
            a.lg(f"ds_write_b64 v18, {vr(XB+2*i,2)} offset:{512*i}", "yw")
        for i in range(2): a.lg(f"ds_read_b128 {vr(TB+4*i,4)}, v12 offset:{A_Y+1024*i}", f"y{i}")
        a(f"""s_lshl_b32 s56, s57, 12
s_add_u32 s56, s56, {YW}
s_lshr_b32 s62, s2, 4
s_lshl_b32 s62, s62, 1
s_add_u32 s62, s62, s57
s_lshl_b32 s62, s62, 5
s_and_b32 s63, s2, 15
s_lshl_b32 s63, s63, 1
s_add_u32 s63, s63, s58
s_add_u32 s62, s62, s63
s_lshl_b32 s62, s62, 2
s_add_u32 s62, s62, {F3}""")
        self.lane0_addr(2, 62)
        for i in range(2):
            a.wait(lg=f"y{i}")
            a(f"buffer_store_dwordx4 {vr(TB+4*i,4)}, v7, s[{WS}:{WS+3}], s56 offen offset:{2048*i} sc1")
        a(f"s_waitcnt vmcnt(0)\nbuffer_store_dword v3, v2, s[{WS}:{WS+3}], 0 offen sc1")
        self.stamp(8)
        a.label("L_wo")
        WO = 64
        a(f"""s_mul_i32 s54, s{sW}, {ARENA}
s_and_b32 s56, s{sH}, 12
s_add_u32 s56, s56, s{sW}
s_mul_i32 s56, s56, 56
s_and_b32 s56, s56, 0xfff0
v_mul_u32_u24 v6, 896, v4
v_lshl_add_u32 v6, v5, 4, v6
v_lshrrev_b32 v8, 5, v1
v_bfe_u32 v9, v1, 2, 2
v_lshl_add_u32 v9, v8, 2, v9
v_lshlrev_b32 v9, 6, v9
v_bfe_u32 v8, v1, 4, 1
v_lshl_add_u32 v9, v8, 5, v9
v_add_u32 v8, s57, v5
v_lshl_add_u32 v9, v8, 3, v9
v_add_u32 v9, s54, v9""")
        srd(a, R0, 8, 401408)
        for rnd in range(2):
            a(f"s_mov_b32 s62, s54\ns_add_u32 s63, s56, {rnd*224*896}\ns_mov_b32 s55, 15")
            a.label(f"L_wo{rnd}")
            a(f"""s_mov_b32 m0, s62
s_add_u32 s62, s62, 1024
buffer_load_dwordx4 v6, s[{R0}:{R0+3}], s63 offen lds
s_add_u32 s63, s63, 14336
s_sub_u32 s55, s55, 1
s_cmp_lg_u32 s55, 0
s_cbranch_scc1 L_wo{rnd}
s_waitcnt vmcnt(0)""")
            for hh in range(8):
                for n in range(4):
                    a(f"ds_read_b64_tr_b16 {vr(WO+64*rnd+8*hh+2*n,2)}, v9 offset:{(28*hh+8*n)*64}")
            a("s_waitcnt lgkmcnt(0)")
        self.stamp(9)
        srd(a, R0, 22, 3670016)
        a("s_cmp_ge_u32 s2, 224\ns_cbranch_scc1 L_p3")
        QR, DR, YR = 32, 40, 44
        a(f"""s_lshl_b32 s56, s60, 6
v_lshl_add_u32 v6, v5, 4, s56
global_load_dwordx4 {vr(QR,4)}, v10, s[10:11]
global_load_dwordx4 {vr(QR+4,4)}, v10, s[10:11] offset:896
global_load_dwordx4 {vr(DR,4)}, v6, s[20:21]
s_lshl_b32 s56, s60, 1
s_lshr_b32 s62, s59, 5
s_add_u32 s56, s56, s62
s_lshl_b32 s56, s56, 7
s_add_u32 s56, s56, {F3}
v_and_b32 v6, 31, v1
v_lshl_add_u32 v6, v6, 2, s56
s_mul_i32 s56, s59, 28672
s_add_u32 s56, s56, 896
v_mul_u32_u24 v7, 1792, v4
v_add3_u32 v7, v7, v10, s56""")
        self.poll(6, 12, sleep=2)
        self.stamp(10)
        a(f"s_mov_b32 s62, {YW}\ns_mov_b32 s63, {YW+65536}")
        for i in range(2): a.vm(f"buffer_load_dwordx4 {vr(YR+4*i,4)}, v16, s[{WS}:{WS+3}], s{62+i} offen sc1", f"y{i}")
        QF, DF, T0 = 192, 208, 216
        for t in range(2):
            for d in range(4): a(f"v_lshlrev_b32 v{QF+8*t+2*d}, 16, v{QR+4*t+d}\nv_and_b32 v{QF+8*t+2*d+1}, s61, v{QR+4*t+d}")
        for d in range(4): a(f"v_lshlrev_b32 v{DF+2*d}, 16, v{DR+d}\nv_and_b32 v{DF+2*d+1}, s61, v{DR+d}")
        for j in range(8): a(f"v_and_b32 v{T0+j}, s61, v{U+j}\nv_lshlrev_b32 v{T0+8+j}, 16, v{U+j}")
        for i in range(2):
            a.wait(vm=f"y{i}")
            a(f"ds_write_b128 v14, {vr(YR+4*i,4)} offset:{1088*i}")
        for j in range(8): a(f"ds_read_b32 v{U+j}, v15 offset:{64*j}")
        a("s_waitcnt lgkmcnt(0)")
        Y0 = 232
        for j in range(8): a(f"v_lshlrev_b32 v{Y0+j}, 16, v{U+j}\nv_and_b32 v{Y0+8+j}, s61, v{U+j}")
        for i in range(8):
            a(f"v_pk_fma_f32 {vr(T0+2*i,2)}, {vr(T0+2*i,2)}, {vr(DF+2*(i%4),2)}, {vr(Y0+2*i,2)}")
        for i in range(8): a(f"v_pk_mul_f32 {vr(T0+2*i,2)}, {vr(T0+2*i,2)}, {vr(QF+2*i,2)}")
        for i in range(8): a(f"v_cvt_pk_bf16_f32 v{QR+i}, v{T0+2*i}, v{T0+2*i+1}")
        for t in range(2): a(f"buffer_store_dwordx4 {vr(QR+4*t,4)}, v7, s[{R0}:{R0+3}], 0 offen offset:{1792*t}")
        a.label("L_p3")
        a(f"""s_lshl_b32 s52, s{sQB}, 2
s_and_b32 s53, s{sH}, 3
s_add_u32 s52, s52, s53
s_lshl_b32 s53, s52, 3
s_add_u32 s53, s53, s{sW}
s_lshl_b32 s53, s53, 4
s_add_u32 s53, s53, {F4}
v_lshl_add_u32 v6, v5, 2, s53
s_lshl_b32 s53, s52, 2
s_add_u32 s53, s53, s{sW}
s_lshl_b32 s53, s53, 13
s_add_u32 s53, s53, {OW}
s_lshl_b32 s54, s{sW}, 13
v_and_b32 v8, 31, v1
v_mul_u32_u24 v8, 240, v8
v_lshrrev_b32 v9, 5, v1
s_mul_i32 s56, s{sW}, 56
s_add_u32 s56, s56, {OT}
v_lshl_add_u32 v7, v9, 3, v8
v_add_u32 v7, s56, v7
v_add_u32 v11, 48, v7
v_add_u32 v8, {OT+224}, v8
v_cmp_eq_u32 vcc, 0, v9
v_cndmask_b32 v8, v8, v11, vcc
s_mul_i32 s52, s52, 57344
s_lshr_b32 s56, s{sH}, 2
s_mul_i32 s56, s56, 224
s_add_u32 s52, s52, s56
s_mov_b32 s56, 4682""")
        for i in range(2):
            a(f"""v_and_b32 v9, 255, v0
v_add_u32 v9, {256*i}, v9
v_mul_u32_u24 v11, s56, v9
v_lshrrev_b32 v11, 16, v11
v_mul_u32_u24 v12, 14, v11
v_sub_u32 v12, v9, v12
v_lshlrev_b32 v12, 4, v12
v_mul_u32_u24 v{14+i}, 240, v11
v_add_u32 v{14+i}, v{14+i}, v12
v_mul_u32_u24 v{16+i}, 1792, v11
v_add_u32 v{16+i}, v{16+i}, v12""")
        a(f"v_cmp_gt_u32 vcc, 448, v9\nv_mov_b32 v12, {OOB}\nv_cndmask_b32 v17, v12, v17, vcc")
        self.stamp(11)
        a("s_barrier")
        self.poll(6, 12)
        self.stamp(12)
        for i2 in range(2):
            a(f"s_add_u32 m0, s54, {OST+4096*i2}\ns_add_u32 s56, s53, {4096*i2}")
            for i in range(4): a(f"buffer_load_dwordx4 v13, s[{WS}:{WS+3}], s56 offen offset:{1024*i} sc1 lds")
        a("s_waitcnt vmcnt(0)\ns_barrier")
        self.stamp(13)
        OB, AO = 192, 32
        a.lq.clear()
        rdO = lambda ks: a.lg(f"ds_read_b128 {vr(OB+4*(ks%8),4)}, v13 offset:{OST+1024*ks}", f"o{ks}")
        for ks in range(6): rdO(ks)
        for ks in range(32):
            a.wait(lg=f"o{ks}")
            a(f"v_mfma_f32_32x32x16_bf16 {vr(AO,16)}, {vr(WO+4*ks,4)}, {vr(OB+4*(ks%8),4)}, {vr(AO,16) if ks else 0}")
            if ks + 6 < 32: rdO(ks + 6)
        a(f"s_or_b32 s56, s2, s{sW}\ns_cmp_eq_u32 s56, 0\ns_cselect_b32 s56, 0, {OOB}\nv_mov_b32 v2, s56\nv_mov_b32 v3, s{sF}")
        a(f"buffer_store_dword v3, v2, s[{WS}:{WS+3}], 0 offen sc1")
        for i in range(8): a(f"v_cvt_pk_bf16_f32 v{48+i}, v{AO+2*i}, v{AO+2*i+1}")
        for j in range(3): a(f"ds_write_b64 v7, {vr(48+2*j,2)} offset:{16*j}")
        a("ds_write_b64 v8, v[54:55]\ns_waitcnt lgkmcnt(0)\ns_barrier")
        for i in range(2): a.lg(f"ds_read_b128 {vr(48+4*i,4)}, v{14+i} offset:{OT}", f"t{i}")
        for i in range(2):
            a.wait(lg=f"t{i}")
            a(f"buffer_store_dwordx4 {vr(48+4*i,4)}, v{16+i}, s[{R0}:{R0+3}], s52 offen")
        self.stamp(14)
        if self.stamps: a("s_waitcnt vmcnt(0)")
        self.stamp(15)
        self.dump_stamps(1)
        a.label("L_end")
        a("s_endpgm")

    def build(self):
        self.entry(); self.roleA(); self.roleB()
        self.a.label("L_hot_end")
        self.fallback()
        body, added = self.a.finish()
        head = open(f"cdna_kernels/{NAME}.s.ref").read().split("; Override launch")[0]
        return head + f"""; Generated by gen/gen.py (hand-designed schedule).  One launch, 256 workgroups of 8 waves:
; waves 0-3: QKV projection, attention; waves 4-7: SSM branch, output projection.
; @launch grid=(256,1,1) block=(512,1,1) lds={LDS}
.amdgcn_target "amdgcn-amd-amdhsa--gfx950"
.text
.globl {NAME}_kernel
.p2align 8
.type {NAME}_kernel,@function
.set CODE_BYTES, L_hot_end - {NAME}_kernel - 16
{NAME}_kernel:
{body}
.section .rodata,"a"
.p2align 6
.amdhsa_kernel {NAME}_kernel
  .amdhsa_next_free_vgpr 256
  .amdhsa_next_free_sgpr 102
  .amdhsa_accum_offset 256
  .amdhsa_group_segment_fixed_size 0
  .amdhsa_kernarg_size 96
  .amdhsa_user_sgpr_count 2
  .amdhsa_user_sgpr_kernarg_segment_ptr 1
  .amdhsa_system_sgpr_workgroup_id_x 1
.end_amdhsa_kernel
"""

if __name__ == "__main__":
    out = sys.argv[1] if len(sys.argv) > 1 else f"cdna_kernels/{NAME}.s"
    g = Gen(stamps="stamps" in sys.argv, force_fb="fb" in sys.argv)
    open(out, "w").write(g.build())
```

```python
import sys, math, struct
from asmlib import *

NAME = "concat_heads__softmax_full_mha__ssm_conv_h3__prompt"
def f32(x): return "0x%08x" % struct.unpack("<I", struct.pack("<f", x))[0]

F1, F4, F2, F3 = 0x1000, 0x3000, 0x5000, 0x6000
KVW, OW, UW, YW, STW = 0x100000, 0x600000, 0x800000, 0xA00000, 0xC00000
WSN = 0x1000000
OOB = 0x40000000
WQ, WKV, XR = 0, 28672, 61440
RED = XR
UA, HC, PB, FLG = 110592, 129024, 145664, 154368
LDS = 156416
ARENA = 15360
OST, OT = 0, 32768
sW, sH, sQB, sF = 28, 29, 30, 31
WS = 32
R0, R1, R2, R3 = 36, 40, 44, 48
sT = 52
SPIN = 1 << 16
NT = ""
OPT = {}

def srd(a, r, base, n):
    a(f"s_mov_b32 s{r}, s{base}\ns_mov_b32 s{r+1}, s{base+1}\ns_mov_b32 s{r+2}, {n}\ns_mov_b32 s{r+3}, 0x20000")

class Gen:
    def __init__(self, stamps=False, force_fb=False):
        self.a = Asm(); self.stamps = stamps; self.force_fb = force_fb; self.ns = 0; self.uid = 0
    def stamp(self, i, j=None):
        if self.stamps == 2: i = j
        if self.stamps and i is not None:
            self.a(f"s_memtime s[{64+2*i}:{65+2*i}]\ns_waitcnt lgkmcnt(0)"); self.a.lq.clear()
    def dump_stamps(self, role):
        if not self.stamps: return
        a = self.a
        a(f"s_lshl_b32 s52, s2, 3\ns_add_u32 s52, s52, s{sW}\ns_add_u32 s52, s52, {4*role}\ns_lshl_b32 s52, s52, 7\ns_add_u32 s52, s52, {STW}")
        a("v_mov_b32 v2, 0")
        for i in range(16):
            a(f"v_mov_b32 v3, s{64+2*i}\nbuffer_store_dword v3, v2, s[{WS}:{WS+3}], s52 offen offset:{4*i}")
        a("v_mov_b32 v3, s96\nbuffer_store_dword v3, v2, s[32:35], s52 offen offset:64")
        a("s_memrealtime s[96:97]\ns_waitcnt lgkmcnt(0)\nv_mov_b32 v3, s96\nbuffer_store_dword v3, v2, s[32:35], s52 offen offset:72")
        a("s_getreg_b32 s53, hwreg(HW_REG_XCC_ID)\nv_mov_b32 v3, s53\nbuffer_store_dword v3, v2, s[32:35], s52 offen offset:68")
    def poll(self, vaddr, vtmp, sleep=0):
        a = self.a; self.uid += 1; L = f"L_poll{self.uid}"
        a(f"s_mov_b32 s63, {SPIN}")
        a.label(L)
        if sleep: a(f"s_sleep {sleep}")
        a(f"""buffer_load_dword v{vtmp}, v{vaddr}, s[{WS}:{WS+3}], 0 offen sc1
s_sub_u32 s63, s63, 1
s_cbranch_scc1 {L}_x
s_waitcnt vmcnt(0)
v_cmp_ne_u32 vcc, s{sF}, v{vtmp}
s_cbranch_vccnz {L}""")
        a.label(L + "_x"); a.vq.clear()
    def lspin(self, vaddr, vtmp, val, sleep=0):
        a = self.a; self.uid += 1; L = f"L_ls{self.uid}"
        a(f"s_mov_b32 s63, {SPIN}")
        a.label(L)
        if sleep: a(f"s_sleep {sleep}")
        a(f"""ds_read_b32 v{vtmp}, v{vaddr}
s_sub_u32 s63, s63, 1
s_cbranch_scc1 {L}_x
s_waitcnt lgkmcnt(0)
v_cmp_gt_u32 vcc, {val}, v{vtmp}
s_cbranch_vccnz {L}""")
        a.label(L + "_x"); a.lq.clear()
    def lane0_addr(self, vdst, soff):
        self.a(f"v_mov_b32 v{vdst}, s{soff}\nv_cmp_eq_u32 vcc, 0, v1\nv_mov_b32 v255, {OOB}\nv_cndmask_b32 v{vdst}, v255, v{vdst}, vcc")

    def entry(self):
        a = self.a
        a(f"""s_cmp_ge_u32 s2, 256
s_cbranch_scc1 L_end
s_getpc_b64 s[60:61]
s_load_dwordx16 s[4:19], s[0:1], 0
s_load_dwordx8 s[20:27], s[0:1], 64
v_lshlrev_b32 v2, 7, v0
v_min_u32 v2, CODE_BYTES, v2""")
        a.vm("global_load_dword v254, v2, s[60:61]", "pf")
        if self.stamps: a("s_memrealtime s[96:97]\ns_memtime s[64:65]")
        a(f"""v_lshrrev_b32 v3, 6, v0
v_and_b32 v1, 63, v0
v_readfirstlane_b32 s3, v3
s_and_b32 s52, s2, 1
s_lshl_b32 s52, s52, 3
s_bfe_u32 s53, s2, 0x30003
s_add_u32 s{sH}, s52, s53
s_bfe_u32 s52, s2, 0x20001
s_lshl_b32 s52, s52, 2
s_lshr_b32 s53, s2, 6
s_add_u32 s{sQB}, s52, s53
s_and_b32 s{sW}, s3, 3
s_mov_b32 s{WS+2}, {WSN}
s_mov_b32 s{WS+3}, 0x20000
s_mov_b32 s{R0+3}, 0x20000
s_cmp_ge_u32 s3, 4
s_cbranch_scc1 L_B""")

    def roleA(self):
        a = self.a
        XF, AK, AV, WB = 16, 128, 144, 208
        KV, Q, O, S, P = 192, 160, 16, 80, 112
        sXB, sCC, sM0, sWO, sMW = 52, 53, 54, 55, 57
        vWK, vWV, vWQ, vFW, vFR, vFT = 240, 241, 242, 243, 244, 245
        a(f"""s_setprio {OPT.get("pa", 0)}
v_lshrrev_b32 v6, 3, v1
v_lshrrev_b32 v7, 4, v1
v_and_b32 v8, 7, v1
v_xor_b32 v8, v8, v7
v_mul_u32_u24 v6, 896, v6
v_lshl_add_u32 v2, v8, 4, v6
v_xor_b32 v3, 64, v2
v_add_u32 v3, 6144, v3
v_add_u32 v4, 12288, v2
v_add_u32 v5, 12288, v3
v_lshrrev_b32 v6, 2, v1
v_and_b32 v15, 3, v1
v_mul_u32_u24 v6, 2688, v6
v_lshl_add_u32 v{vWQ}, v15, 4, v6
v_add_u32 v{vWV}, 768, v{vWQ}
v_add_u32 v{vWK}, 896, v{vWQ}
s_lshl_b32 s{sXB}, s{sQB}, 2
s_add_u32 s{sXB}, s{sXB}, s{sW}
s_mul_i32 s{sXB}, s{sXB}, 28672
s_and_b32 s56, s{sQB}, 3
s_lshl_b32 s56, s56, 1
s_and_b32 s{sCC}, s{sH}, 7
s_add_u32 s{sCC}, s{sCC}, s56
s_sub_u32 s56, s{sCC}, 7
s_cselect_b32 s{sCC}, s{sCC}, s56
s_mul_i32 s{sM0}, s{sW}, 12288
s_add_u32 s{sM0}, s{sM0}, {XR}
s_mul_i32 s{sWO}, s{sH}, 56
s_and_b32 s{sWO}, s{sWO}, 0xfff0
s_mul_i32 s56, s{sW}, 43008
s_add_u32 s{sWO}, s{sWO}, s56
s_lshl_b32 s{sMW}, s{sW}, 11
s_mov_b32 s{R0+2}, 1835008
s_mov_b32 s{R1+2}, 1204224
s_mov_b32 s{R1+3}, 0x20000
s_waitcnt lgkmcnt(0)
s_mov_b32 s{R0}, s4
s_mov_b32 s{R0+1}, s5
s_mov_b32 s{R1}, s6
s_mov_b32 s{R1+1}, s7""")
        self.stamp(None, 1)
        nxt = f"s_add_u32 s{sCC}, s{sCC}, 1\ns_cmp_eq_u32 s{sCC}, 7\ns_cselect_b32 s{sCC}, 0, s{sCC}"
        def xdma(i):
            a(f"s_add_u32 m0, s{sMW}, {WKV+(i%4)*8192}\ns_mul_i32 s56, s{sCC}, 172032\ns_add_u32 s56, s56, s{sWO}")
            a.vm(f"buffer_load_dwordx4 v{vWK}, s[{R1}:{R1+3}], s56 offen {NT} lds", f"x{i}")
            a.vm(f"buffer_load_dwordx4 v{vWV}, s[{R1}:{R1+3}], s56 offen offset:1024 {NT} lds", f"x{i}")
            a(f"s_add_u32 m0, s{sM0}, {(i%3)*4096}\ns_lshl_b32 s56, s{sCC}, 7\ns_add_u32 s56, s56, s{sXB}")
            for p in range(4):
                a.vm(f"buffer_load_dwordx4 v{2+p}, s[{R0}:{R0+3}], s56 offen offset:{1024*p} {NT} lds", f"x{i}")
            a(nxt)
        def qdma(i):
            if i == 0: a(f"s_lshr_b32 s{sMW}, s{sMW}, 1")
            a(f"s_add_u32 m0, s{sMW}, {WQ+i*4096}\ns_mul_i32 s56, s{sCC}, 172032\ns_add_u32 s56, s56, s{sWO}")
            a.vm(f"buffer_load_dwordx4 v{vWQ}, s[{R1}:{R1+3}], s56 offen {NT} lds", "wq")
            a(nxt)
        xdma(0)
        a(f"s_load_dword s{sF}, s[26:27], 0\ns_mov_b32 s{WS}, s26\ns_mov_b32 s{WS+1}, s27")
        xdma(1)
        a(f"""v_and_b32 v12, 31, v1
v_lshrrev_b32 v13, 5, v1
v_bfe_u32 v14, v1, 1, 3
v_xor_b32 v14, v14, v13
v_lshlrev_b32 v14, 4, v14
v_lshl_add_u32 v14, v12, 7, v14
v_add_u32 v6, s{sM0}, v14
v_xor_b32 v7, 32, v6
v_xor_b32 v8, 64, v6
v_xor_b32 v9, 96, v6
v_bfe_u32 v14, v1, 2, 2
v_lshl_add_u32 v14, v13, 3, v14
v_lshlrev_b32 v14, 6, v14
v_bfe_u32 v11, v1, 4, 1
v_lshl_add_u32 v14, v11, 5, v14
s_and_b32 s56, s{sH}, 1
v_add_u32 v15, s56, v15
v_lshl_add_u32 v10, v15, 3, v14
v_cmp_gt_u32 s[58:59], 28, v12
v_cmp_eq_u32 vcc, 28, v12
v_mov_b32 v14, 0x3f803f80
v_cndmask_b32 v12, 0, v14, vcc
v_cmp_eq_u32 s[60:61], 0, v13
v_lshlrev_b32 v13, 4, v1
s_lshl_b32 s56, s{sW}, 2
s_add_u32 s56, s56, {FLG}
v_add_u32 v{vFW}, s56, v13
s_mov_b32 s56, {FLG}
v_lshl_add_u32 v{vFR}, v1, 2, s56
s_waitcnt lgkmcnt(0)
s_add_u32 s{sF}, s{sF}, 0x9e3779b9
s_barrier""")
        self.stamp(None, 2)
        xdma(2)
        self.stamp(1)
        def sync(val):
            a(f"v_mov_b32 v{vFT}, {val}\nds_write_b32 v{vFW}, v{vFT}")
            self.lspin(vFR, 14, val)
        def reads_kv(s):
            i, kk = divmod(s, 4)
            if kk == 0:
                a.wait(vm=f"x{i}")
                for k2 in range(4):
                    a.lg(f"ds_read_b128 {vr(XF+4*(s+k2),4)}, v{6+k2} offset:{(i%3)*4096}", f"xr{i}")
                sync(i + 1)
                self.stamp(2 if i == 0 else None, 3 + i)
            b = WB + 8 * (s % 4)
            return [(f"ds_read_b64_tr_b16 {vr(b+2*n,2)}, v10 offset:{WKV+(i%4)*8192+kk*2048+(n>>1)*1024+(n&1)*256}", f"w{s}") for n in range(4)]
        for s in (0, 1):
            for t, g in reads_kv(s): a.lg(t, g)
        for s in range(28):
            a.wait(lg=f"w{s}")
            b = WB + 8 * (s % 4); x = vr(XF + 4 * s, 4)
            a(f"v_mfma_f32_32x32x16_bf16 {vr(AK,16)}, {vr(b,4)}, {x}, {vr(AK,16) if s else 0}")
            if s % 4 == 0 and s // 4 + 3 < 7: xdma(s // 4 + 3)
            if s % 4 == 2:
                a(f"v_mfma_f32_32x32x16_bf16 {vr(AV,16)}, {x}, {vr(b+4,4)}, {vr(AV,16) if s else 0}")
                for t, g in (reads_kv(s + 2) if s + 2 < 28 else []): a.lg(t, g)
                continue
            if 15 <= s <= 17 or 19 <= s <= 21 or s == 13: qdma({13: 0, 15: 1, 16: 2, 17: 3, 19: 4, 20: 5, 21: 6}[s])
            rd = reads_kv(s + 2) if s + 2 < 28 else []
            for t, g in rd[:2]: a.lg(t, g)
            a(f"v_mfma_f32_32x32x16_bf16 {vr(AV,16)}, {x}, {vr(b+4,4)}, {vr(AV,16) if s else 0}")
            for t, g in rd[2:]: a.lg(t, g)
        self.stamp(3, 10)
        a(f"""s_lshl_b32 s52, s{sH}, 2
s_add_u32 s52, s52, s{sW}
s_lshl_b32 s53, s52, 4
s_add_u32 s53, s53, s{sQB}
s_lshl_b32 s53, s53, 12
s_add_u32 s53, s53, {KVW}
s_lshl_b32 s54, s52, 7
s_add_u32 s54, s54, {F1}
s_lshl_b32 s56, s{sQB}, 2
s_add_u32 s56, s56, s54
s_lshl_b32 s55, s{sQB}, 2
s_add_u32 s55, s55, s{sW}
s_lshl_b32 s55, s55, 4
s_add_u32 s55, s55, s{sH}
s_lshl_b32 s55, s55, 11
s_add_u32 s55, s55, {OW}""")
        for i in range(4): a(f"v_mov_b32 v{Q+i}, -1")
        for i in range(8): a(f"v_cvt_pk_bf16_f32 v{KV+i}, v{AK+2*i}, v{AK+2*i+1}")
        a(f"v_cndmask_b32 v{KV+6}, 0, v{KV+6}, s[60:61]\nv_cndmask_b32 v{KV+7}, 0, v{KV+7}, s[60:61]")
        for i in range(2): a.vm(f"buffer_store_dwordx4 {vr(KV+4*i,4)}, v13, s[{WS}:{WS+3}], s53 offen offset:{1024*i} sc1", "kv")
        for i in range(8):
            a(f"v_cvt_pk_bf16_f32 v{KV+8+i}, v{AV+2*i}, v{AV+2*i+1}")
        for i in range(8):
            a(f"v_cndmask_b32 v{KV+8+i}, v12, v{KV+8+i}, s[58:59]")
        for i in range(2, 4): a.vm(f"buffer_store_dwordx4 {vr(KV+4*i,4)}, v13, s[{WS}:{WS+3}], s53 offen offset:{1024*i} sc1", "kv")
        for i in range(2): a.vm(f"buffer_store_dwordx4 {vr(Q,4)}, v13, s[{WS}:{WS+3}], s55 offen offset:{1024*i} sc1", "kv")
        self.stamp(4)
        a.wait(vm="wq")
        sync(8)
        self.stamp(5, 11)
        def reads_q(s):
            b = WB + 4 * (s % 8)
            for n in range(2): a.lg(f"ds_read_b64_tr_b16 {vr(b+2*n,2)}, v10 offset:{WQ+s*1024+n*256}", f"w{s}")
        for s in range(6): reads_q(s)
        self.lane0_addr(2, 56)
        c = math.log2(math.e) / math.sqrt(28.0)
        a(f"""v_mov_b32 v3, s{sF}
v_and_b32 v4, 15, v1
v_lshl_add_u32 v4, v4, 2, s54
s_lshl_b32 s57, s{sW}, 11
v_add_u32 v5, s57, v13""")
        for g in range(3):
            a(f"s_add_u32 s57, s{sW}, {g+1}\ns_and_b32 s57, s57, 3\ns_lshl_b32 s56, s57, 11\ns_mul_i32 s57, s57, 12288\ns_add_u32 s57, s57, {XR}\nv_add_u32 v{6+g}, s57, v13\nv_add_u32 v{(9,11,15)[g]}, s56, v13")
        a(f"s_mov_b32 s56, {f32(c)}")
        zr = list(range(O, O + 64)) + list(range(S + 28, S + 32)) + list(range(P, P + 8))
        for s in range(28):
            a.wait(lg=f"w{s}")
            a(f"v_mfma_f32_32x32x16_bf16 {vr(AK,16)}, {vr(WB+4*(s%8),4)}, {vr(XF+4*s,4)}, {vr(AK,16) if s else 0}")
            if s + 6 < 28: reads_q(s + 6)
            n = 0
            while zr and zr[0] < XF + 4 * (s - 1) and n < 4:
                a(f"v_mov_b32 v{zr.pop(0)}, 0"); n += 1
        for r in zr + list(range(KV + 56, KV + 64)): a(f"v_mov_b32 v{r}, 0")
        self.stamp(6)
        for i in range(16): a(f"v_mul_f32 v{AK+i}, s56, v{AK+i}")
        for i in range(8): a(f"v_cvt_pk_bf16_f32 v{Q+24+i}, v{AK+2*i}, v{AK+2*i+1}")
        a(f"v_cndmask_b32 v{Q+30}, 0, v{Q+30}, s[60:61]\nv_cndmask_b32 v{Q+31}, 0, v{Q+31}, s[60:61]")
        a(f"ds_write_b128 v5, {vr(Q+24,4)} offset:{WKV}\nds_write_b128 v5, {vr(Q+28,4)} offset:{WKV+1024}")
        a(f"v_mov_b32 v{vFT}, 9\nds_write_b32 v{vFW}, v{vFT}")
        a.wait(vm="all")
        a(f"buffer_store_dword v3, v2, s[{WS}:{WS+3}], 0 offen sc1")
        self.lspin(vFR, 14, 9)
        for g in range(3):
            a(f"ds_read_b128 {vr(Q+8*g,4)}, v{(9,11,15)[g]} offset:{WKV}\nds_read_b128 {vr(Q+8*g+4,4)}, v{(9,11,15)[g]} offset:{WKV+1024}")
        a(f"v_mov_b32 v{vFT}, 10\nds_write_b32 v{vFW}, v{vFT}")
        self.stamp(7, 12)
        self.poll(4, 14)
        self.stamp(8, 13)
        a(f"s_lshl_b32 s52, s52, 16\ns_add_u32 s52, s52, {KVW}\nv_add_u32 v5, s52, v13\ns_lshl_b32 s57, s{sQB}, 12")
        adv = ["s_add_u32 s57, s57, 16384", "s_and_b32 s57, s57, 0xffff"]
        ld = lambda buf, i: f"buffer_load_dwordx4 {vr(KV+16*buf+4*i,4)}, v5, s[{WS}:{WS+3}], s57 offen offset:{1024*i} sc1"
        for t in (1, 2):
            a("\n".join(adv))
            for i in range(4): a(ld(t, i))
        a("\n".join(adv))
        a(f"""s_waitcnt lgkmcnt(0)
v_mfma_f32_32x32x16_bf16 {vr(S,16)}, {vr(KV,4)}, {vr(Q,4)}, 0
s_mov_b32 s62, 4
s_setprio 0
v_mfma_f32_32x32x16_bf16 {vr(S,16)}, {vr(KV+4,4)}, {vr(Q+4,4)}, {vr(S,16)}
s_nop 8""")
        a(".p2align 6"); a.label("L_att")
        def slot(u):
            t, g = divmod(u, 4)
            tp, gp = divmod((u - 1) % 16, 4); tn, gn = divmod((u + 1) % 16, 4)
            Sc, So = S + 16 * (u & 1), S + 16 * ((u + 1) & 1)
            cv = lambda i, s: f"v_cvt_pk_bf16_f32 v{P+i}, v{s+2*i}, v{s+2*i+1}"
            ex = lambda r: "\n".join(f"v_exp_f32 v{Sc+r+i}, v{Sc+r+i}" for i in range(4))
            Op = vr(O + 16 * gp, 16)
            a(f"v_mfma_f32_32x32x16_bf16 {Op}, {vr(KV+16*tp+8,4)}, {vr(P,4)}, {Op}")
            if g == 3: a("s_waitcnt vmcnt(7)")
            if g == 0 and u: a(adv[1])
            a(cv(6, So)); a(cv(7, So)); a(ex(0))
            a(f"v_mfma_f32_32x32x16_bf16 {vr(So,16)}, {vr(KV+16*tn,4)}, {vr(Q+8*gn,4)}, 0")
            if u == 15: a("s_sub_u32 s62, s62, 1")
            a(cv(0, Sc)); a(cv(1, Sc)); a(ex(4))
            a(f"v_mfma_f32_32x32x16_bf16 {vr(So,16)}, {vr(KV+16*tn+4,4)}, {vr(Q+8*gn+4,4)}, {vr(So,16)}")
            a(ld((t + 3) % 4, g))
            a(cv(2, Sc)); a(cv(3, Sc)); a(ex(8))
            a(f"v_mfma_f32_32x32x16_bf16 {Op}, {vr(KV+16*tp+12,4)}, {vr(P+4,4)}, {Op}")
            if g == 3: a(adv[0] if t else "s_add_u32 s57, s57, 20480")
            a(cv(4, Sc)); a(cv(5, Sc)); a(ex(12))
        for u in range(16): slot(u)
        a(adv[1])
        a("s_cmp_lg_u32 s62, 0\ns_cbranch_scc1 L_att")
        O3 = vr(O + 48, 16)
        a("s_setprio 3")
        a(f"""v_mfma_f32_32x32x16_bf16 {O3}, {vr(KV+56,4)}, {vr(P,4)}, {O3}
v_cvt_pk_bf16_f32 v{P+6}, v{S+28}, v{S+29}
v_cvt_pk_bf16_f32 v{P+7}, v{S+30}, v{S+31}""")
        self.stamp(9)
        for i in range(4): a(f"ds_write_b128 v6, {vr(O+4*i,4)} offset:{1024*i}")
        a(f"v_mfma_f32_32x32x16_bf16 {O3}, {vr(KV+60,4)}, {vr(P+4,4)}, {O3}")
        for g in range(1, 3):
            for i in range(4): a(f"ds_write_b128 v{6+g}, {vr(O+16*g+4*i,4)} offset:{4096*g+1024*i}")
        a(f"s_mul_i32 s57, s{sW}, 12288\ns_add_u32 s57, s57, {RED}\nv_add_u32 v6, s57, v13")
        a("s_waitcnt lgkmcnt(0)")
        self.stamp(10)
        a("s_barrier")
        self.stamp(11)
        for n in range(12): a.lg(f"ds_read_b128 {vr(O+4*n,4)}, v6 offset:{1024*n}", f"r{n//4}")
        Of = O + 48
        for g in range(3):
            a.wait(lg=f"r{g}")
            for i in range(8): a(f"v_pk_add_f32 {vr(Of+2*i,2)}, {vr(Of+2*i,2)}, {vr(O+16*g+2*i,2)}")
        a(f"v_mov_b32 v8, v{Of+12}\nv_mov_b32 v9, v{Of+12}")
        a(f"v_pk_add_f32 v[16:17], {vr(Of,2)}, {vr(Of+2,2)}")
        a("v_permlane32_swap_b32 v8, v9")
        for i in range(2, 8): a(f"v_pk_add_f32 v[16:17], v[16:17], {vr(Of+2*i,2)}")
        a(f"""v_add_f32 v16, v16, v17
v_mov_b32 v17, 0x1f8
s_mov_b32 s56, {f32(2.0**-60)}
s_mov_b32 s57, {f32(2.0**40)}
v_cmp_class_f32 vcc, v16, v17
v_cmp_le_f32 s[58:59], s56, v9
v_cmp_ge_f32 s[62:63], s57, v9
s_and_b64 vcc, vcc, s[58:59]
s_and_b64 vcc, vcc, s[62:63]
s_cmp_eq_u64 vcc, -1""")
        a("s_cbranch_scc0 L_fb" if not self.force_fb else "s_branch L_fb")
        a.label("L_norm")
        a("v_rcp_f32 v9, v9")
        for i in range(16): a(f"v_mul_f32 v{Of+i}, v9, v{Of+i}")
        for i in range(8): a(f"v_cvt_pk_bf16_f32 v{P+i}, v{Of+2*i}, v{Of+2*i+1}")
        a(f"v_cndmask_b32 v{P+6}, 0, v{P+6}, s[60:61]\nv_cndmask_b32 v{P+7}, 0, v{P+7}, s[60:61]")
        for i in range(2): a(f"buffer_store_dwordx4 {vr(P+4*i,4)}, v13, s[{WS}:{WS+3}], s55 offen offset:{1024*i} sc1")
        self.stamp(12)
        self.dump_stamps(0)
        a("s_endpgm")
        self.fb = (KV, Q + 24, Of, S, P)

    def fallback(self):
        a = self.a; KV, Qo, Of, S, P = self.fb
        a.label("L_fb")
        a(f"""s_waitcnt vmcnt(0)
s_lshl_b32 s52, s{sH}, 18
s_add_u32 s52, s52, {KVW}
s_add_u32 s56, s52, 0x40000
s_mov_b32 s57, s52
v_mov_b32 v8, 0xff800000""")
        qk = f"""v_mfma_f32_32x32x16_bf16 {vr(S,16)}, {vr(KV,4)}, {vr(Qo,4)}, 0
v_mfma_f32_32x32x16_bf16 {vr(S,16)}, {vr(KV+4,4)}, {vr(Qo+4,4)}, {vr(S,16)}"""
        ld = lambda i: f"buffer_load_dwordx4 {vr(KV+4*i,4)}, v13, s[{WS}:{WS+3}], s57 offen offset:{1024*i} sc1"
        a.label("L_fb1")
        a(ld(0)); a(ld(1)); a("s_waitcnt vmcnt(0)"); a(qk)
        for i in range(8): a(f"v_max3_f32 v8, v8, v{S+2*i}, v{S+2*i+1}")
        a("s_add_u32 s57, s57, 4096\ns_cmp_lt_u32 s57, s56\ns_cbranch_scc1 L_fb1")
        a("v_mov_b32 v9, v8\nv_permlane32_swap_b32 v8, v9\nv_max_f32 v8, v8, v9\ns_mov_b32 s57, s52")
        for i in range(16): a(f"v_mov_b32 v{Of+i}, 0")
        a.label("L_fb2")
        for i in range(4): a(ld(i))
        a("s_waitcnt vmcnt(0)"); a(qk)
        for i in range(16): a(f"v_sub_f32 v{S+i}, v{S+i}, v8")
        for i in range(16): a(f"v_exp_f32 v{S+i}, v{S+i}")
        for i in range(8): a(f"v_cvt_pk_bf16_f32 v{P+i}, v{S+2*i}, v{S+2*i+1}")
        a(f"""v_mfma_f32_32x32x16_bf16 {vr(Of,16)}, {vr(KV+8,4)}, {vr(P,4)}, {vr(Of,16)}
v_mfma_f32_32x32x16_bf16 {vr(Of,16)}, {vr(KV+12,4)}, {vr(P+4,4)}, {vr(Of,16)}
s_add_u32 s57, s57, 4096
s_cmp_lt_u32 s57, s56
s_cbranch_scc1 L_fb2
s_nop 15
v_mov_b32 v8, v{Of+12}
v_mov_b32 v9, v{Of+12}
s_nop 1
v_permlane32_swap_b32 v8, v9
s_nop 1
s_branch L_norm""")

    def roleB(self):
        a = self.a
        a(".p2align 6"); a.label("L_B"); a.vq = ["pf"]; a.lq = []
        KR, VR, HR, WT, KF, U = 32, 52, 60, 72, 104, 20
        a(f"""s_setprio 1
v_lshrrev_b32 v4, 2, v1
v_and_b32 v5, 3, v1
v_lshlrev_b32 v13, 4, v1
s_and_b32 s57, s{sW}, 1
s_lshr_b32 s58, s{sW}, 1
s_and_b32 s59, s2, 31
s_lshl_b32 s59, s59, 1
s_add_u32 s59, s59, s57
s_lshr_b32 s60, s2, 5
s_lshl_b32 s60, s60, 1
s_add_u32 s60, s60, s58
s_mul_i32 s61, s59, 28672
s_lshl_b32 s62, s60, 6
s_add_u32 s61, s61, s62
v_mul_u32_u24 v10, 1792, v4
v_lshl_add_u32 v10, v5, 4, v10
v_add_u32 v10, s61, v10""")
        for jj in range(3): a(f"v_subrev_u32 v{14+jj}, {896*(3-jj)}, v10")
        a(f"""s_mul_i32 s54, s{sW}, 2176
s_add_u32 s54, s54, {PB}
s_mov_b32 m0, s54
s_lshl_b32 s56, s60, 8
v_lshl_add_u32 v18, v1, 2, s56
s_lshl_b32 s61, s57, 11
v_add_u32 v11, s61, v13
s_lshl_b32 s61, s2, 1
s_add_u32 s61, s61, s58
s_lshl_b32 s61, s61, 12
s_mov_b32 s{R3+2}, 4096
s_mov_b32 s{R3+3}, 0x20000
s_cmp_lt_u32 s2, 224
s_waitcnt lgkmcnt(0)
s_load_dword s{sF}, s[26:27], 0
s_cbranch_scc0 L_nold""")
        srd(a, R1, 12, 1835008)
        a.vm("global_load_lds_dword v18, s[16:17]", "sk")
        for jj in range(3): a.vm(f"buffer_load_dwordx4 {vr(KR+4*jj,4)}, v{14+jj}, s[{R1}:{R1+3}], 0 offen", "k")
        for jj in range(2): a.vm(f"buffer_load_dwordx4 {vr(KR+12+4*jj,4)}, v10, s[{R1}:{R1+3}], 0 offen offset:{896*jj}", "k")
        for jj in range(2): a.vm(f"global_load_dwordx4 {vr(VR+4*jj,4)}, v10, s[14:15] offset:{896*jj}", "v")
        a(f"s_add_u32 s{R3}, s18, s61\ns_addc_u32 s{R3+1}, s19, 0")
        a.label("L_nold")
        a(f"""s_lshr_b32 s56, s2, 3
s_lshl_b32 s56, s56, 2
s_add_u32 s56, s56, s{sW}
s_mul_i32 s56, s56, 9408
s_and_b32 s62, s2, 1
s_mul_i32 s62, s62, 384
s_add_u32 s56, s56, s62
v_min_u32 v6, 3, v4
v_mul_u32_u24 v6, 2688, v6
v_lshl_add_u32 v6, v5, 7, v6
s_lshl_b32 s62, s{sW}, 31
s_lshr_b32 s62, s62, 31
s_mul_i32 s62, s62, 1344
s_sub_u32 s56, s56, s62
v_add_u32 v6, s56, v6""")
        a.vm("global_load_dword v253, v6, s[6:7]", "pq")
        self.stamp(None, 1)
        a(f"""s_mul_i32 s56, s{sW}, 4160
s_add_u32 s56, s56, {HC}
v_and_b32 v7, 7, v1
v_lshl_add_u32 v7, v7, 2, s56
v_mov_b32 v8, 0
v_mov_b32 v9, 0
s_lshl_b32 s56, s{sW}, 9
s_add_u32 s56, s56, {FLG}
v_lshl_add_u32 v6, v1, 3, s56
s_mul_i32 s55, s{sW}, 4608
s_add_u32 s55, s55, {UA}
v_lshl_add_u32 v2, v1, 3, s55
ds_write_b32 v7, v8
ds_write_b64 v6, v[8:9]
ds_write_b64 v2, v[8:9]
s_mov_b32 s{WS}, s26
s_mov_b32 s{WS+1}, s27
v_lshl_add_u32 v18, v5, 6, s54
s_mov_b32 s61, 0xffff0000
s_waitcnt lgkmcnt(0)
s_add_u32 s{sF}, s{sF}, 0x9e3779b9
s_barrier
s_cmp_lt_u32 s2, 224
s_cbranch_scc0 L_wo""")
        self.stamp(1, 2)
        a.wait(vm="sk")
        for i in range(4): a.lg(f"ds_read_b128 {vr(KF+4*i,4)}, v18 offset:{16*i}", "sk")
        a(f"""v_mul_u32_u24 v19, 544, v5
v_xor_b32 v14, 3, v4
v_lshl_add_u32 v15, v4, 2, v19
v_add_u32 v15, s54, v15
v_lshl_add_u32 v19, v14, 2, v19
v_add_u32 v19, s54, v19
v_lshrrev_b32 v14, 5, v1
v_mul_u32_u24 v14, 544, v14
v_bfe_u32 v16, v1, 2, 3
v_lshl_add_u32 v14, v16, 6, v14
v_lshl_add_u32 v14, v5, 4, v14
v_add_u32 v14, s54, v14
v_lshrrev_b32 v16, 3, v1
v_lshlrev_b32 v16, 13, v16
v_and_b32 v12, 7, v1
v_lshl_add_u32 v16, v12, 4, v16
s_lshl_b32 s56, s60, 17
s_lshl_b32 s62, s59, 7
s_add_u32 s56, s56, s62
v_add_u32 v16, s56, v16""")
        a.wait(lg="sk")
        for j in range(8):
            a(f"v_lshlrev_b32 v{WT+j}, 16, v{KF+2*j}\nv_and_b32 v{WT+8+j}, s61, v{KF+2*j}\nv_lshlrev_b32 v{WT+16+j}, 16, v{KF+2*j+1}\nv_and_b32 v{WT+24+j}, s61, v{KF+2*j+1}")
        a.wait(vm="k")
        self.stamp(2, 3)
        for r in range(5):
            for d in range(4):
                a(f"v_lshlrev_b32 v{KF+8*r+2*d}, 16, v{KR+4*r+d}\nv_and_b32 v{KF+8*r+2*d+1}, s61, v{KR+4*r+d}")
        AC = 144; VF = 160
        for t in range(2):
            for d in range(4):
                acc = vr(AC + 8 * t + 2 * d, 2)
                for tap in (3, 2, 1, 0):
                    kk = vr(KF + 8 * (t + 3 - tap) + 2 * d, 2); ww = vr(WT + 8 * tap + 2 * d, 2)
                    a(f"v_pk_mul_f32 {acc}, {kk}, {ww}" if tap == 3 else f"v_pk_fma_f32 {acc}, {kk}, {ww}, {acc}")
        a.wait(vm="v")
        for t in range(2):
            for d in range(4):
                a(f"v_lshlrev_b32 v{VF+8*t+2*d}, 16, v{VR+4*t+d}\nv_and_b32 v{VF+8*t+2*d+1}, s61, v{VR+4*t+d}")
        for i in range(8): a(f"v_pk_mul_f32 {vr(AC+2*i,2)}, {vr(AC+2*i,2)}, {vr(VF+2*i,2)}")
        for j in range(8):
            a(f"v_cvt_pk_bf16_f32 v{U+j}, v{AC+8+j}, v{AC+j}")
        for j in range(8): a.lg(f"ds_write_b32 v19, v{U+j} offset:{64*j}", "uw")
        for i in range(2): a.lg(f"ds_read_b128 {vr(KR+4*i,4)}, v14 offset:{1088*i}", f"ur{i}")
        a(f"s_mov_b32 s62, {UW}\ns_mov_b32 s63, {UW+65536}")
        for i in range(2):
            a.wait(lg=f"ur{i}")
            a.vm(f"buffer_store_dwordx4 {vr(KR+4*i,4)}, v16, s[{WS}:{WS+3}], s{62+i} offen sc1", "us")
        self.stamp(3, 4)
        a(f"s_lshl_b32 s56, s60, 6\ns_add_u32 s56, s56, s59\ns_lshl_b32 s56, s56, 2\ns_add_u32 s56, s56, {F2}")
        self.lane0_addr(2, 56)
        a(f"""v_mov_b32 v3, s{sF}
s_lshl_b32 s56, s{sW}, 2
s_add_u32 s56, s56, {FLG+1024}
v_add_u32 v250, s56, v13
v_xor_b32 v251, 4, v250
v_subrev_u32 v248, 4, v11
v_add_u32 v249, 1020, v11
v_mov_b32 v247, v11
s_mul_i32 s56, s58, 8320
s_add_u32 s56, s56, {HC+32}
v_add_u32 v252, s56, v11
s_mov_b32 s56, {FLG}
v_lshl_add_u32 v246, v1, 2, s56""")
        a(f"""s_lshr_b32 s56, s2, 4
s_lshl_b32 s56, s56, 8
s_add_u32 s56, s56, {F2}
v_lshl_add_u32 v6, v1, 2, s56
v_lshlrev_b32 v7, 7, v4
v_lshl_add_u32 v7, v5, 4, v7
s_lshl_b32 s56, s2, 13
s_lshl_b32 s62, s58, 6
s_add_u32 s56, s56, s62
v_add_u32 v7, s56, v7
v_and_b32 v8, 15, v1
v_lshrrev_b32 v9, 4, v1
v_lshlrev_b32 v11, 5, v8
v_lshlrev_b32 v12, 4, v9
v_sub_u32 v17, v11, v12
s_lshl_b32 s56, s57, 8
s_sub_u32 s62, s55, s56
s_add_u32 s62, s62, {512+16-192}
v_add_u32 v17, s62, v17
v_lshl_add_u32 v18, v9, 3, v11
v_add_u32 v18, s54, v18
v_lshrrev_b32 v11, 1, v8
v_lshl_add_u32 v11, v11, 2, v12
v_and_b32 v8, 1, v8
v_xor_b32 v8, 1, v8
v_mul_u32_u24 v8, 4160, v8
v_add_u32 v11, v11, v8
s_mul_i32 s62, s58, 8320
s_add_u32 s62, s62, s56
s_add_u32 s62, s62, {HC+4}
v_add_u32 v28, s62, v11
v_add_u32 v29, 1024, v28
v_add_u32 v30, 2048, v28
v_add_u32 v31, 3072, v28""")
        TB, XB, ACC = 64, 128, 192
        def rdT(rho):
            o = []
            for m in range(8):
                b = TB + 32 * (rho & 1) + 4 * m; d = (m & 1) * 128 + 16 * rho
                o.append(f"ds_read2_b32 {vr(b,2)}, v{28+(m>>1)} offset0:{d} offset1:{d+1}")
                o.append(f"ds_read2_b32 {vr(b+2,2)}, v{28+(m>>1)} offset0:{d+2} offset1:{d+3}")
            return o
        def rdX(rho):
            return [f"ds_read_b128 {vr(XB+32*(rho&1)+4*n,4)}, v17 offset:{512*n-64*rho+192}" for n in range(8)]
        self.stamp(4)
        a(f"s_waitcnt vmcnt(0)\nbuffer_store_dword v3, v2, s[{WS}:{WS+3}], 0 offen sc1"); a.vq.clear()
        self.lspin(246, 12, int(OPT.get("hw", 7)), sleep=4)
        self.stamp(5, 5)
        for i in range(2):
            a.vm(f"buffer_load_dwordx4 {vr(HR+4*i,4)}, v247, s[{R3}:{R3+3}], 0 offen offset:{1024*i}", "h")
            a.vm(f"buffer_load_dword v{HR+8+i}, v{248+i}, s[{R3}:{R3+3}], 0 offen", "h")
        a(f"""s_lshr_b32 s56, s2, 3
s_lshl_b32 s56, s56, 2
s_add_u32 s56, s56, s{sW}
s_mul_i32 s56, s56, 3584
v_min_u32 v8, 27, v1
v_lshl_add_u32 v8, v8, 7, s56
global_load_dword v253, v8, s[8:9]""")
        self.poll(6, 12, sleep=2)
        self.stamp(6, 6)
        a(f"s_add_u32 m0, s55, 512\ns_mov_b32 s56, {UW}")
        for i in range(4):
            a(f"buffer_load_dwordx4 v7, s[{WS}:{WS+3}], s56 offen offset:{1024*i} sc1 lds\ns_add_u32 s56, s56, 1024")
        for i in range(2):
            a(f"ds_write_b128 v252, {vr(HR+4*i,4)} offset:{1024*i}")
            for d in range(4):
                a(f"v_alignbit_b32 v{WT+4*i+d}, v{HR+4*i+d}, v{HR+4*i+d-1 if d else HR+8+i}, 16")
            a(f"ds_write_b128 v252, {vr(WT+4*i,4)} offset:{4160+1024*i}")
        a("v_mov_b32 v8, 1\nds_write_b32 v250, v8")
        self.lspin(251, 12, 1)
        for t in rdT(0): a(t)
        a("s_waitcnt vmcnt(0)")
        self.stamp(None, 7)
        for t in rdX(0): a(t)
        for rho in range(4):
            a("s_waitcnt lgkmcnt(0)")
            pre = (rdX(rho + 1) + rdT(rho + 1)) if rho < 3 else []
            for m in range(8):
                for c in range(7, m - 1, -1):
                    acc = vr(ACC + 4 * c, 4)
                    a(f"v_mfma_f32_16x16x32_bf16 {acc}, {vr(TB+32*(rho&1)+4*m,4)}, {vr(XB+32*(rho&1)+4*(c-m),4)}, {acc if (rho or m) else 0}")
                    if pre: a(pre.pop(0))
        self.stamp(7, 8)
        a(f"""s_xor_b32 s56, s{sW}, 1
s_mul_i32 s62, s56, 4608
s_add_u32 s62, s62, {UA}
v_add_u32 v8, s55, v13
v_add_u32 v11, s62, v13
v_mov_b32 v9, 2
v_add_u32 v12, s54, v13
s_cmp_eq_u32 s57, 0
s_cbranch_scc1 L_nosw""")
        for i in range(16): a(f"v_swap_b32 v{ACC+i}, v{ACC+16+i}")
        a.label("L_nosw")
        for i in range(4): a(f"ds_write_b128 v8, {vr(ACC+16+4*i,4)} offset:{1024*i}")
        a("ds_write_b32 v250, v9")
        self.lspin(251, 8, 2)
        for i in range(4): a.lg(f"ds_read_b128 {vr(TB+4*i,4)}, v11 offset:{1024*i}", f"e{i}")
        for i in range(4):
            a.wait(lg=f"e{i}")
            a(f"""v_pk_add_f32 {vr(ACC+4*i,2)}, {vr(ACC+4*i,2)}, {vr(TB+4*i,2)}
v_pk_add_f32 {vr(ACC+4*i+2,2)}, {vr(ACC+4*i+2,2)}, {vr(TB+4*i+2,2)}
v_cvt_pk_bf16_f32 v{XB+2*i}, v{ACC+4*i}, v{ACC+4*i+1}
v_cvt_pk_bf16_f32 v{XB+2*i+1}, v{ACC+4*i+2}, v{ACC+4*i+3}""")
            a.lg(f"ds_write_b64 v18, {vr(XB+2*i,2)} offset:{512*i}", "yw")
        for i in range(2): a.lg(f"ds_read_b128 {vr(TB+4*i,4)}, v12 offset:{1024*i}", f"y{i}")
        a(f"""s_lshl_b32 s56, s57, 12
s_add_u32 s56, s56, {YW}
s_lshr_b32 s62, s2, 4
s_lshl_b32 s62, s62, 1
s_add_u32 s62, s62, s57
s_lshl_b32 s62, s62, 5
s_and_b32 s63, s2, 15
s_lshl_b32 s63, s63, 1
s_add_u32 s63, s63, s58
s_add_u32 s62, s62, s63
s_lshl_b32 s62, s62, 2
s_add_u32 s62, s62, {F3}""")
        self.lane0_addr(2, 62)
        for i in range(2):
            a.wait(lg=f"y{i}")
            a(f"buffer_store_dwordx4 {vr(TB+4*i,4)}, v7, s[{WS}:{WS+3}], s56 offen offset:{2048*i} sc1")
        a(f"s_waitcnt vmcnt(0)\nbuffer_store_dword v3, v2, s[{WS}:{WS+3}], 0 offen sc1")
        self.stamp(8)
        a.label("L_wo")
        WO = 64
        a(f"""s_mul_i32 s54, s{sW}, {ARENA}
s_and_b32 s56, s{sH}, 12
s_add_u32 s56, s56, s{sW}
s_mul_i32 s56, s56, 56
s_and_b32 s56, s56, 0xfff0
v_mul_u32_u24 v6, 896, v4
v_lshl_add_u32 v6, v5, 4, v6
v_lshrrev_b32 v8, 5, v1
v_bfe_u32 v9, v1, 2, 2
v_lshl_add_u32 v9, v8, 2, v9
v_lshlrev_b32 v9, 6, v9
v_bfe_u32 v8, v1, 4, 1
v_lshl_add_u32 v9, v8, 5, v9
v_add_u32 v8, s57, v5
v_lshl_add_u32 v9, v8, 3, v9
v_add_u32 v9, s54, v9""")
        srd(a, R0, 8, 401408)
        a(f"s_mov_b32 s62, {FLG}\nv_lshl_add_u32 v8, v1, 2, s62")
        self.lspin(8, 12, 10, sleep=4)
        for rnd in range(2):
            a(f"s_mov_b32 s62, s54\ns_add_u32 s63, s56, {rnd*224*896}\ns_mov_b32 s55, 15")
            a.label(f"L_wo{rnd}")
            a(f"""s_mov_b32 m0, s62
s_add_u32 s62, s62, 1024
buffer_load_dwordx4 v6, s[{R0}:{R0+3}], s63 offen lds
s_add_u32 s63, s63, 14336
s_sub_u32 s55, s55, 1
s_cmp_lg_u32 s55, 0
s_cbranch_scc1 L_wo{rnd}
s_waitcnt vmcnt(0)""")
            for hh in range(8):
                for n in range(4):
                    a(f"ds_read_b64_tr_b16 {vr(WO+64*rnd+8*hh+2*n,2)}, v9 offset:{(28*hh+8*n)*64}")
            a("s_waitcnt lgkmcnt(0)")
        self.stamp(9)
        srd(a, R0, 22, 3670016)
        a(f"""s_and_b32 s53, s{sH}, 3
s_lshl_b32 s56, s{sW}, 4
s_add_u32 s56, s56, s53
s_lshl_b32 s56, s56, 5
s_add_u32 s56, s56, s{sQB}
s_lshl_b32 s56, s56, 2
s_add_u32 s56, s56, {F1}
v_lshl_add_u32 v6, v5, 9, s56""")
        self.poll(6, 12, sleep=2)
        a(f"v_mov_b32 v19, {OOB}\ns_cmp_ge_u32 s2, 224\ns_cbranch_scc1 L_p3")
        QR, DR, YR, YT = 32, 40, 44, 52
        a(f"""s_lshl_b32 s56, s60, 6
v_lshl_add_u32 v6, v5, 4, s56
global_load_dwordx4 {vr(QR,4)}, v10, s[10:11]
global_load_dwordx4 {vr(QR+4,4)}, v10, s[10:11] offset:896
global_load_dwordx4 {vr(DR,4)}, v6, s[20:21]
s_lshl_b32 s56, s60, 1
s_lshr_b32 s62, s59, 5
s_add_u32 s56, s56, s62
s_lshl_b32 s56, s56, 7
s_add_u32 s56, s56, {F3}
v_and_b32 v6, 31, v1
v_lshl_add_u32 v6, v6, 2, s56
s_mul_i32 s56, s59, 28672
s_add_u32 s56, s56, 896
v_mul_u32_u24 v19, 1792, v4
v_add3_u32 v19, v19, v10, s56""")
        self.poll(6, 12, sleep=2)
        self.stamp(10)
        a(f"s_mov_b32 s62, {YW}\ns_mov_b32 s63, {YW+65536}")
        for i in range(2): a.vm(f"buffer_load_dwordx4 {vr(YR+4*i,4)}, v16, s[{WS}:{WS+3}], s{62+i} offen sc1", f"y{i}")
        for i in range(2):
            a.wait(vm=f"y{i}")
            a(f"ds_write_b128 v14, {vr(YR+4*i,4)} offset:{1088*i}")
        for j in range(8): a(f"ds_read_b32 v{YT+j}, v15 offset:{64*j}")
        a.label("L_p3")
        self.stamp(11)
        a("s_waitcnt lgkmcnt(0)\ns_barrier")
        QF, DF, T0, Y0 = 192, 208, 216, 232
        for t in range(2):
            for d in range(4): a(f"v_lshlrev_b32 v{QF+8*t+2*d}, 16, v{QR+4*t+d}\nv_and_b32 v{QF+8*t+2*d+1}, s61, v{QR+4*t+d}")
        for d in range(4): a(f"v_lshlrev_b32 v{DF+2*d}, 16, v{DR+d}\nv_and_b32 v{DF+2*d+1}, s61, v{DR+d}")
        for j in range(8): a(f"v_and_b32 v{T0+j}, s61, v{U+j}\nv_lshlrev_b32 v{T0+8+j}, 16, v{U+j}")
        for j in range(8): a(f"v_lshlrev_b32 v{Y0+j}, 16, v{YT+j}\nv_and_b32 v{Y0+8+j}, s61, v{YT+j}")
        for i in range(8):
            a(f"v_pk_fma_f32 {vr(T0+2*i,2)}, {vr(T0+2*i,2)}, {vr(DF+2*(i%4),2)}, {vr(Y0+2*i,2)}")
        for i in range(8): a(f"v_pk_mul_f32 {vr(T0+2*i,2)}, {vr(T0+2*i,2)}, {vr(QF+2*i,2)}")
        for i in range(8): a(f"v_cvt_pk_bf16_f32 v{U+i}, v{T0+2*i}, v{T0+2*i+1}")
        a(f"""s_lshl_b32 s52, s{sQB}, 2
s_add_u32 s52, s52, s53
s_lshl_b32 s53, s52, 2
s_add_u32 s53, s53, s{sW}
s_lshl_b32 s53, s53, 13
s_add_u32 s53, s53, {OW}
s_add_u32 s55, s53, 4096
s_lshl_b32 s54, s{sW}, 13
v_add_u32 v6, s54, v13
v_and_b32 v8, 31, v1
v_mul_u32_u24 v8, 240, v8
v_lshrrev_b32 v9, 5, v1
s_mul_i32 s56, s{sW}, 56
s_add_u32 s56, s56, {OT}
v_lshl_add_u32 v7, v9, 3, v8
v_add_u32 v7, s56, v7
v_add_u32 v11, 48, v7
v_add_u32 v8, {OT+224}, v8
v_cmp_eq_u32 vcc, 0, v9
v_cndmask_b32 v8, v8, v11, vcc
s_mul_i32 s52, s52, 57344
s_lshr_b32 s56, s{sH}, 2
s_mul_i32 s56, s56, 224
s_add_u32 s52, s52, s56
s_mov_b32 s56, 4682""")
        for i in range(2):
            a(f"""v_and_b32 v9, 255, v0
v_add_u32 v9, {256*i}, v9
v_mul_u32_u24 v11, s56, v9
v_lshrrev_b32 v11, 16, v11
v_mul_u32_u24 v12, 14, v11
v_sub_u32 v12, v9, v12
v_lshlrev_b32 v12, 4, v12
v_mul_u32_u24 v{14+i}, 240, v11
v_add_u32 v{14+i}, v{14+i}, v12
v_mul_u32_u24 v{16+i}, 1792, v11
v_add_u32 v{16+i}, v{16+i}, v12""")
        a(f"v_cmp_gt_u32 vcc, 448, v9\nv_mov_b32 v12, {OOB}\nv_cndmask_b32 v17, v12, v17, vcc\ns_mov_b32 s63, {SPIN}")
        OL = 224
        a.label("L_og"); a.vq.clear()
        for i in range(8): a.vm(f"buffer_load_dwordx4 {vr(OL+4*i,4)}, v13, s[{WS}:{WS+3}], s{(53,55)[i//4]} offen offset:{1024*(i%4)} sc1", f"o{i}")
        a("s_sub_u32 s63, s63, 1")
        for i in range(8):
            a.wait(vm=f"o{i}")
            a(f"v_max_u32 v12, v{OL}, v{OL+2}" if i == 0 else f"v_max3_u32 v12, v12, v{OL+4*i}, v{OL+4*i+2}")
            a(f"ds_write_b128 v6, {vr(OL+4*i,4)} offset:{OST+1024*i}")
        a("v_cmp_eq_u32 vcc, -1, v12\ns_cmp_eq_u32 s63, 0\ns_cselect_b64 vcc, 0, vcc\ns_cbranch_vccnz L_og")
        self.stamp(12)
        for t in range(2): a(f"buffer_store_dwordx4 {vr(U+4*t,4)}, v19, s[{R0}:{R0+3}], 0 offen offset:{1792*t}")
        a("s_waitcnt lgkmcnt(0)\ns_barrier")
        self.stamp(13)
        OB, AO = 192, 32
        a.lq.clear()
        rdO = lambda ks: a.lg(f"ds_read_b128 {vr(OB+4*(ks%8),4)}, v13 offset:{OST+1024*ks}", f"o{ks}")
        for ks in range(6): rdO(ks)
        for ks in range(32):
            a.wait(lg=f"o{ks}")
            a(f"v_mfma_f32_32x32x16_bf16 {vr(AO,16)}, {vr(WO+4*ks,4)}, {vr(OB+4*(ks%8),4)}, {vr(AO,16) if ks else 0}")
            if ks + 6 < 32: rdO(ks + 6)
        a(f"s_or_b32 s56, s2, s{sW}\ns_cmp_eq_u32 s56, 0\ns_cselect_b32 s56, 0, {OOB}\nv_mov_b32 v2, s56\nv_mov_b32 v3, s{sF}")
        a(f"buffer_store_dword v3, v2, s[{WS}:{WS+3}], 0 offen sc1")
        for i in range(8): a(f"v_cvt_pk_bf16_f32 v{48+i}, v{AO+2*i}, v{AO+2*i+1}")
        for j in range(3): a(f"ds_write_b64 v7, {vr(48+2*j,2)} offset:{16*j}")
        a("ds_write_b64 v8, v[54:55]\ns_waitcnt lgkmcnt(0)\ns_barrier")
        for i in range(2): a.lg(f"ds_read_b128 {vr(48+4*i,4)}, v{14+i} offset:{OT}", f"t{i}")
        for i in range(2):
            a.wait(lg=f"t{i}")
            a(f"buffer_store_dwordx4 {vr(48+4*i,4)}, v{16+i}, s[{R0}:{R0+3}], s52 offen")
        self.stamp(14)
        if self.stamps: a("s_waitcnt vmcnt(0)")
        self.stamp(15, 15)
        self.dump_stamps(1)
        a.label("L_end")
        a("s_endpgm")

    def build(self):
        self.entry(); self.roleA(); self.roleB()
        self.a.label("L_hot_end")
        self.fallback()
        body, added = self.a.finish()
        head = open(f"cdna_kernels/{NAME}.s.ref").read().split("; Override launch")[0]
        return head + f"""; Generated by gen/gen.py (hand-designed schedule).  One launch, 256 workgroups of 8 waves:
; waves 0-3: QKV projection, attention; waves 4-7: SSM branch, output projection.
; @launch grid=(256,1,1) block=(512,1,1) lds={LDS}
.amdgcn_target "amdgcn-amd-amdhsa--gfx950"
.text
.globl {NAME}_kernel
.p2align 8
.type {NAME}_kernel,@function
.set CODE_BYTES, L_hot_end - {NAME}_kernel - 16
{NAME}_kernel:
{body}
.section .rodata,"a"
.p2align 6
.amdhsa_kernel {NAME}_kernel
  .amdhsa_next_free_vgpr 256
  .amdhsa_next_free_sgpr 102
  .amdhsa_accum_offset 256
  .amdhsa_group_segment_fixed_size 0
  .amdhsa_kernarg_size 96
  .amdhsa_user_sgpr_count 2
  .amdhsa_user_sgpr_kernarg_segment_ptr 1
  .amdhsa_system_sgpr_workgroup_id_x 1
.end_amdhsa_kernel
"""

if __name__ == "__main__":
    out = sys.argv[1] if len(sys.argv) > 1 else f"cdna_kernels/{NAME}.s"
    OPT.update(dict(x.split("=") for x in sys.argv if "=" in x))
    NT = OPT.get("nt", "")
    g = Gen(stamps=2 if "stamps2" in sys.argv else int("stamps" in sys.argv), force_fb="fb" in sys.argv)
    open(out, "w").write(g.build())
```

```python
from lib import *
def k(nst, mod="sc1", mask=0, rot=False, w=4, lay=None, base=0, flag=0, rd=0, ep=0):
    op = {4: "dwordx4", 2: "dwordx2", 1: "dword"}[w]; dr = {4: "v[8:11]", 2: "v[8:9]", 1: "v8"}[w]
    s = f"""  s_load_dwordx2 s[4:5], s[0:1], 16
  s_load_dwordx2 s[6:7], s[0:1], 0
  v_and_b32 v1, 63, v0
  v_lshrrev_b32 v2, 6, v0
  s_nop 1
  v_readfirstlane_b32 s28, v2
  s_lshl_b32 s29, s2, 2
  s_add_u32 s29, s29, s28
  s_waitcnt lgkmcnt(0)
  s_mov_b32 s8, s4
  s_mov_b32 s9, s5
  s_mov_b32 s10, 0x100000
  s_mov_b32 s11, 0x00020000
  s_mov_b32 s16, s6
  s_mov_b32 s17, s7
  s_mov_b32 s18, 0x1000000
  s_mov_b32 s19, 0x00020000
  s_and_b32 s52, s2, {mask}
  s_cselect_b32 s18, 0, s18
  s_mul_i32 s53, s29, {nst*256*w}
  v_mul_u32_u24 v13, {4*w}, v1
  s_lshr_b32 s54, s2, 3
  s_add_u32 s54, s54, s28
"""
    if lay:
        s += f"""  s_and_b32 s52, s2, 1
  s_lshl_b32 s52, s52, 3
  s_bfe_u32 s53, s2, 0x30003
  s_add_u32 s30, s52, s53
  s_bfe_u32 s52, s2, 0x20001
  s_lshl_b32 s52, s52, 2
  s_lshr_b32 s53, s2, 6
  s_add_u32 s31, s52, s53
  s_mul_i32 s30, s30, {lay[0]}
  s_mul_i32 s31, s31, {lay[1]}
  s_mul_i32 s53, s28, {lay[2]}
  s_add_u32 s53, s53, s30
  s_add_u32 s53, s53, s31
  s_add_u32 s53, s53, {base}
"""
    if ep: s += "  s_load_dword s57, s[6:7], 0xf0000\n  s_waitcnt lgkmcnt(0)\n"
    for i in range(8, 12): s += f"  v_mov_b32 v{i}, v1\n"
    s += "  s_memrealtime s[40:41]\n  s_memtime s[32:33]\n  s_waitcnt lgkmcnt(0)\n"
    for i in range(nst):
        if rot: s += f"  s_add_u32 s55, s54, {i}\n  s_and_b32 s55, s55, {nst-1}\n  s_mul_i32 s55, s55, {256*w}\n  s_add_u32 s55, s55, s53\n"
        else: s += f"  s_add_u32 s55, s53, {256*w*i}\n"
        s += f"  buffer_store_{op} {dr}, v13, s[16:19], s55 offen {mod}\n"
    s += "  s_waitcnt vmcnt(0)\n  s_memtime s[34:35]\n  s_memrealtime s[44:45]\n  s_waitcnt lgkmcnt(0)\n"
    if flag:
        s += "  s_lshl_b32 s56, s29, 7\n  s_add_u32 s56, s56, 0x800000\n  v_mov_b32 v2, s56\n"
        if flag == 1: s += "  v_mov_b32 v7, 0x40000000\n  v_cmp_eq_u32 vcc, 0, v1\n  s_nop 1\n  v_cndmask_b32 v2, v7, v2, vcc\n"
        if flag == 2: s += "  s_mov_b64 exec, 1\n"
        s += "  buffer_store_dword v1, v2, s[16:19], 0 offen sc1\n  s_waitcnt vmcnt(0)\n  s_mov_b64 exec, -1\n"
    if rd:
        s += "  s_sleep 127\n  s_xor_b32 s53, s53, 0x4000\n"
        for i in range(4): s += f"  buffer_load_dwordx4 v[{16+4*i}:{19+4*i}], v13, s[16:19], s53 offen offset:{1024*i} sc1\n"
        s += "  s_waitcnt vmcnt(0)\n"
    s += "  s_lshl_b32 s2, s29, 4\n  v_mov_b32 v1, s2\n"
    for j, r in enumerate((32, 34, 40, 44)): s += f"  v_mov_b32 v2, s{r}\n  buffer_store_dword v2, v1, s[8:11], 0 offen offset:{4*j}\n"
    return s + "  s_endpgm\n"
ks = {}
K=4096
L=(64*K,K,16*K)
ks["hwq"]=(k(4,lay=L,base=0x400000),0)
for f in (1,2,3): ks[f"flag{f}"]=(k(4,lay=L,base=0x400000,flag=f),0)
ks["rd"]=(k(4,lay=L,base=0x400000,rd=1),0)
ks["ep"]=(k(4,lay=L,base=0x400000,ep=1),0)
ks["all"]=(k(4,lay=L,base=0x400000,ep=1,rd=1,flag=1),0)
ks["hwq2"]=(k(4,lay=L,base=0x400000),0)
build("mb14_gen", [(n+"_kernel", b[0], 128) for n, b in ks.items()])
if ON_GPU:
    kk = cl.AsmKernel("mb14_gen.co", list(ks)[0]+"_kernel")
    out = cl.DeviceBuffer(1<<24); dbg = cl.DeviceBuffer(4096); ws = cl.DeviceBuffer(1<<20); big = cl.DeviceBuffer(1<<29)
    ka = cl.pack_ptr_kernargs([out.ptr, dbg.ptr, ws.ptr]); ep = 0
    for n in ks:
        f = kk.function(n+"_kernel"); r = []
        for it, cold in enumerate((1, 1, 0, 0)):
            if cold: memset(big, it)
            sync(); launch(f, 256, 256, ka, 100000); sync()
            a = ws.to_numpy(np.uint32, (1024, 4)).astype(np.int64)
            a = a[((np.arange(1024) >> 2) & ks[n][1]) == 0]
            d = a[:, 1] - a[:, 0]; r0 = a[:, 2].min()
            if it % 2: r.append(f"cold{cold} drain {int(np.median(d))}/{d.max()} st {(a[:,2]-r0).max()} dr {(a[:,3]-r0).max()}")
        print(f"{n:12s}", " | ".join(r))
```

```python
import sys, math, struct
from asmlib import *

NAME = "concat_heads__softmax_full_mha__ssm_conv_h3__prompt"
def f32(x): return "0x%08x" % struct.unpack("<I", struct.pack("<f", x))[0]

F1, F4, F2, F3 = 0x1000, 0x3000, 0x5000, 0x6000
KVW, OW, UW, YW, STW = 0x100000, 0x600000, 0x800000, 0xA00000, 0xC00000
WSN = 0x1000000
OOB = 0x40000000
WQ, WKV, XR = 0, 28672, 61440
RED = XR
UA, HC, PB, FLG = 110592, 129024, 145664, 154368
LDS = 156416
ARENA = 15360
OST, OT = 0, 32768
sW, sH, sQB, sF = 28, 29, 30, 31
WS = 32
R0, R1, R2, R3 = 36, 40, 44, 48
sT = 52
SPIN = 1 << 16
NT = ""
OPT = {}

def srd(a, r, base, n):
    a(f"s_mov_b32 s{r}, s{base}\ns_mov_b32 s{r+1}, s{base+1}\ns_mov_b32 s{r+2}, {n}\ns_mov_b32 s{r+3}, 0x20000")

class Gen:
    def __init__(self, stamps=False, force_fb=False):
        self.a = Asm(); self.stamps = stamps; self.force_fb = force_fb; self.ns = 0; self.uid = 0
    def stamp(self, i, j=None):
        if self.stamps == 2: i = j
        if self.stamps and i is not None:
            self.a(f"s_memtime s[{64+2*i}:{65+2*i}]\ns_waitcnt lgkmcnt(0)"); self.a.lq.clear()
    def dump_stamps(self, role):
        if not self.stamps: return
        a = self.a
        a(f"s_lshl_b32 s52, s2, 3\ns_add_u32 s52, s52, s{sW}\ns_add_u32 s52, s52, {4*role}\ns_lshl_b32 s52, s52, 7\ns_add_u32 s52, s52, {STW}")
        a("v_mov_b32 v2, 0")
        for i in range(16):
            a(f"v_mov_b32 v3, s{64+2*i}\nbuffer_store_dword v3, v2, s[{WS}:{WS+3}], s52 offen offset:{4*i}")
        a("v_mov_b32 v3, s96\nbuffer_store_dword v3, v2, s[32:35], s52 offen offset:64")
        a("s_memrealtime s[96:97]\ns_waitcnt lgkmcnt(0)\nv_mov_b32 v3, s96\nbuffer_store_dword v3, v2, s[32:35], s52 offen offset:72")
        a("s_getreg_b32 s53, hwreg(HW_REG_XCC_ID)\nv_mov_b32 v3, s53\nbuffer_store_dword v3, v2, s[32:35], s52 offen offset:68")
    def poll(self, vaddr, vtmp, sleep=0):
        a = self.a; self.uid += 1; L = f"L_poll{self.uid}"
        a(f"s_mov_b32 s63, {SPIN}")
        a.label(L)
        if sleep: a(f"s_sleep {sleep}")
        a(f"""buffer_load_dword v{vtmp}, v{vaddr}, s[{WS}:{WS+3}], 0 offen sc1
s_sub_u32 s63, s63, 1
s_cbranch_scc1 {L}_x
s_waitcnt vmcnt(0)
v_cmp_ne_u32 vcc, s{sF}, v{vtmp}
s_cbranch_vccnz {L}""")
        a.label(L + "_x"); a.vq.clear()
    def lspin(self, vaddr, vtmp, val, sleep=0):
        a = self.a; self.uid += 1; L = f"L_ls{self.uid}"
        a(f"s_mov_b32 s63, {SPIN}")
        a.label(L)
        if sleep: a(f"s_sleep {sleep}")
        a(f"""ds_read_b32 v{vtmp}, v{vaddr}
s_sub_u32 s63, s63, 1
s_cbranch_scc1 {L}_x
s_waitcnt lgkmcnt(0)
v_cmp_gt_u32 vcc, {val}, v{vtmp}
s_cbranch_vccnz {L}""")
        a.label(L + "_x"); a.lq.clear()
    def lane0_addr(self, vdst, soff):
        self.a(f"v_mov_b32 v{vdst}, s{soff}\nv_cmp_eq_u32 vcc, 0, v1\nv_mov_b32 v255, {OOB}\nv_cndmask_b32 v{vdst}, v255, v{vdst}, vcc")

    def entry(self):
        a = self.a
        a(f"""s_cmp_ge_u32 s2, 256
s_cbranch_scc1 L_end
s_getpc_b64 s[60:61]
s_load_dwordx16 s[4:19], s[0:1], 0
s_load_dwordx8 s[20:27], s[0:1], 64
v_lshlrev_b32 v2, 7, v0
v_min_u32 v2, CODE_BYTES, v2""")
        a.vm("global_load_dword v254, v2, s[60:61]", "pf")
        if self.stamps: a("s_memrealtime s[96:97]\ns_memtime s[64:65]")
        a(f"""v_lshrrev_b32 v3, 6, v0
v_and_b32 v1, 63, v0
v_readfirstlane_b32 s3, v3
s_and_b32 s52, s2, 1
s_lshl_b32 s52, s52, 3
s_bfe_u32 s53, s2, 0x30003
s_add_u32 s{sH}, s52, s53
s_bfe_u32 s52, s2, 0x20001
s_lshl_b32 s52, s52, 2
s_lshr_b32 s53, s2, 6
s_add_u32 s{sQB}, s52, s53
s_and_b32 s{sW}, s3, 3
s_mov_b32 s{WS+2}, {WSN}
s_mov_b32 s{WS+3}, 0x20000
s_mov_b32 s{R0+3}, 0x20000
s_cmp_ge_u32 s3, 4
s_cbranch_scc1 L_B""")

    def roleA(self):
        a = self.a
        XF, AK, AV, WB = 16, 128, 144, 208
        KV, Q, O, S, P = 192, 160, 16, 80, 112
        sXB, sCC, sM0, sWO, sMW = 52, 53, 54, 55, 57
        vWK, vWV, vWQ, vFW, vFR, vFT = 240, 241, 242, 243, 244, 245
        a(f"""s_setprio {OPT.get("pa", 0)}
v_lshrrev_b32 v6, 3, v1
v_lshrrev_b32 v7, 4, v1
v_and_b32 v8, 7, v1
v_xor_b32 v8, v8, v7
v_mul_u32_u24 v6, 896, v6
v_lshl_add_u32 v2, v8, 4, v6
v_xor_b32 v3, 64, v2
v_add_u32 v3, 6144, v3
v_add_u32 v4, 12288, v2
v_add_u32 v5, 12288, v3
v_lshrrev_b32 v6, 2, v1
v_and_b32 v15, 3, v1
v_mul_u32_u24 v6, 2688, v6
v_lshl_add_u32 v{vWQ}, v15, 4, v6
v_add_u32 v{vWV}, 768, v{vWQ}
v_add_u32 v{vWK}, 896, v{vWQ}
s_lshl_b32 s{sXB}, s{sQB}, 2
s_add_u32 s{sXB}, s{sXB}, s{sW}
s_mul_i32 s{sXB}, s{sXB}, 28672
s_and_b32 s56, s{sQB}, 3
s_lshl_b32 s56, s56, 1
s_and_b32 s{sCC}, s{sH}, 7
s_add_u32 s{sCC}, s{sCC}, s56
s_sub_u32 s56, s{sCC}, 7
s_cselect_b32 s{sCC}, s{sCC}, s56
s_mul_i32 s{sM0}, s{sW}, 12288
s_add_u32 s{sM0}, s{sM0}, {XR}
s_mul_i32 s{sWO}, s{sH}, 56
s_and_b32 s{sWO}, s{sWO}, 0xfff0
s_mul_i32 s56, s{sW}, 43008
s_add_u32 s{sWO}, s{sWO}, s56
s_lshl_b32 s{sMW}, s{sW}, 11
s_mov_b32 s{R0+2}, 1835008
s_mov_b32 s{R1+2}, 1204224
s_mov_b32 s{R1+3}, 0x20000
s_waitcnt lgkmcnt(0)
s_mov_b32 s{R0}, s4
s_mov_b32 s{R0+1}, s5
s_mov_b32 s{R1}, s6
s_mov_b32 s{R1+1}, s7""")
        self.stamp(None, 1)
        nxt = f"s_add_u32 s{sCC}, s{sCC}, 1\ns_cmp_eq_u32 s{sCC}, 7\ns_cselect_b32 s{sCC}, 0, s{sCC}"
        def xdma(i):
            a(f"s_add_u32 m0, s{sMW}, {WKV+(i%4)*8192}\ns_mul_i32 s56, s{sCC}, 172032\ns_add_u32 s56, s56, s{sWO}")
            a.vm(f"buffer_load_dwordx4 v{vWK}, s[{R1}:{R1+3}], s56 offen {NT} lds", f"x{i}")
            a.vm(f"buffer_load_dwordx4 v{vWV}, s[{R1}:{R1+3}], s56 offen offset:1024 {NT} lds", f"x{i}")
            a(f"s_add_u32 m0, s{sM0}, {(i%3)*4096}\ns_lshl_b32 s56, s{sCC}, 7\ns_add_u32 s56, s56, s{sXB}")
            for p in range(4):
                a.vm(f"buffer_load_dwordx4 v{2+p}, s[{R0}:{R0+3}], s56 offen offset:{1024*p} {NT} lds", f"x{i}")
            a(nxt)
        def qdma(i):
            if i == 0: a(f"s_lshr_b32 s{sMW}, s{sMW}, 1")
            a(f"s_add_u32 m0, s{sMW}, {WQ+i*4096}\ns_mul_i32 s56, s{sCC}, 172032\ns_add_u32 s56, s56, s{sWO}")
            a.vm(f"buffer_load_dwordx4 v{vWQ}, s[{R1}:{R1+3}], s56 offen {NT} lds", "wq")
            a(nxt)
        xdma(0)
        a(f"s_load_dword s{sF}, s[26:27], 0\ns_mov_b32 s{WS}, s26\ns_mov_b32 s{WS+1}, s27")
        xdma(1)
        a(f"""v_and_b32 v12, 31, v1
v_lshrrev_b32 v13, 5, v1
v_bfe_u32 v14, v1, 1, 3
v_xor_b32 v14, v14, v13
v_lshlrev_b32 v14, 4, v14
v_lshl_add_u32 v14, v12, 7, v14
v_add_u32 v6, s{sM0}, v14
v_xor_b32 v7, 32, v6
v_xor_b32 v8, 64, v6
v_xor_b32 v9, 96, v6
v_bfe_u32 v14, v1, 2, 2
v_lshl_add_u32 v14, v13, 3, v14
v_lshlrev_b32 v14, 6, v14
v_bfe_u32 v11, v1, 4, 1
v_lshl_add_u32 v14, v11, 5, v14
s_and_b32 s56, s{sH}, 1
v_add_u32 v15, s56, v15
v_lshl_add_u32 v10, v15, 3, v14
v_cmp_gt_u32 s[58:59], 28, v12
v_cmp_eq_u32 vcc, 28, v12
v_mov_b32 v14, 0x3f803f80
v_cndmask_b32 v12, 0, v14, vcc
v_cmp_eq_u32 s[60:61], 0, v13
v_lshlrev_b32 v13, 4, v1
s_lshl_b32 s56, s{sW}, 2
s_add_u32 s56, s56, {FLG}
v_add_u32 v{vFW}, s56, v13
s_mov_b32 s56, {FLG}
v_lshl_add_u32 v{vFR}, v1, 2, s56
s_waitcnt lgkmcnt(0)
s_add_u32 s{sF}, s{sF}, 0x9e3779b9
s_barrier""")
        self.stamp(None, 2)
        xdma(2)
        self.stamp(1)
        def sync(val):
            a(f"v_mov_b32 v{vFT}, {val}\nds_write_b32 v{vFW}, v{vFT}")
            self.lspin(vFR, 14, val)
        def reads_kv(s):
            i, kk = divmod(s, 4)
            if kk == 0:
                a.wait(vm=f"x{i}")
                for k2 in range(4):
                    a.lg(f"ds_read_b128 {vr(XF+4*(s+k2),4)}, v{6+k2} offset:{(i%3)*4096}", f"xr{i}")
                sync(i + 1)
                self.stamp(2 if i == 0 else None, 3 + i)
            b = WB + 8 * (s % 4)
            return [(f"ds_read_b64_tr_b16 {vr(b+2*n,2)}, v10 offset:{WKV+(i%4)*8192+kk*2048+(n>>1)*1024+(n&1)*256}", f"w{s}") for n in range(4)]
        for s in (0, 1):
            for t, g in reads_kv(s): a.lg(t, g)
        for s in range(28):
            a.wait(lg=f"w{s}")
            b = WB + 8 * (s % 4); x = vr(XF + 4 * s, 4)
            a(f"v_mfma_f32_32x32x16_bf16 {vr(AK,16)}, {vr(b,4)}, {x}, {vr(AK,16) if s else 0}")
            if s % 4 == 0 and s // 4 + 3 < 7: xdma(s // 4 + 3)
            if s % 4 == 2:
                a(f"v_mfma_f32_32x32x16_bf16 {vr(AV,16)}, {x}, {vr(b+4,4)}, {vr(AV,16) if s else 0}")
                for t, g in (reads_kv(s + 2) if s + 2 < 28 else []): a.lg(t, g)
                continue
            if 15 <= s <= 17 or 19 <= s <= 21 or s == 13: qdma({13: 0, 15: 1, 16: 2, 17: 3, 19: 4, 20: 5, 21: 6}[s])
            rd = reads_kv(s + 2) if s + 2 < 28 else []
            for t, g in rd[:2]: a.lg(t, g)
            a(f"v_mfma_f32_32x32x16_bf16 {vr(AV,16)}, {x}, {vr(b+4,4)}, {vr(AV,16) if s else 0}")
            for t, g in rd[2:]: a.lg(t, g)
        self.stamp(3, 10)
        a(f"""s_lshl_b32 s52, s{sH}, 2
s_add_u32 s52, s52, s{sW}
s_lshl_b32 s53, s52, 4
s_add_u32 s53, s53, s{sQB}
s_lshl_b32 s53, s53, 12
s_add_u32 s53, s53, {KVW}
s_lshl_b32 s54, s52, 7
s_add_u32 s54, s54, {F1}
s_lshl_b32 s56, s{sQB}, 2
s_add_u32 s56, s56, s54
s_lshl_b32 s55, s{sQB}, 2
s_add_u32 s55, s55, s{sW}
s_lshl_b32 s55, s55, 4
s_add_u32 s55, s55, s{sH}
s_lshl_b32 s55, s55, 11
s_add_u32 s55, s55, {OW}""")
        for i in range(4): a(f"v_mov_b32 v{Q+i}, -1")
        for i in range(8): a(f"v_cvt_pk_bf16_f32 v{KV+i}, v{AK+2*i}, v{AK+2*i+1}")
        a(f"v_cndmask_b32 v{KV+6}, 0, v{KV+6}, s[60:61]\nv_cndmask_b32 v{KV+7}, 0, v{KV+7}, s[60:61]")
        for i in range(2): a.vm(f"buffer_store_dwordx4 {vr(KV+4*i,4)}, v13, s[{WS}:{WS+3}], s53 offen offset:{1024*i} sc1", "kv")
        for i in range(8):
            a(f"v_cvt_pk_bf16_f32 v{KV+8+i}, v{AV+2*i}, v{AV+2*i+1}")
        for i in range(8):
            a(f"v_cndmask_b32 v{KV+8+i}, v12, v{KV+8+i}, s[58:59]")
        for i in range(2, 4): a.vm(f"buffer_store_dwordx4 {vr(KV+4*i,4)}, v13, s[{WS}:{WS+3}], s53 offen offset:{1024*i} sc1", "kv")
        for i in range(2): a.vm(f"buffer_store_dwordx4 {vr(Q,4)}, v13, s[{WS}:{WS+3}], s55 offen offset:{1024*i} sc1", "kv")
        self.stamp(4)
        a.wait(vm="wq")
        sync(8)
        self.stamp(5, 11)
        def reads_q(s):
            b = WB + 4 * (s % 8)
            for n in range(2): a.lg(f"ds_read_b64_tr_b16 {vr(b+2*n,2)}, v10 offset:{WQ+s*1024+n*256}", f"w{s}")
        for s in range(6): reads_q(s)
        self.lane0_addr(2, 56)
        c = math.log2(math.e) / math.sqrt(28.0)
        a(f"""v_mov_b32 v3, s{sF}
v_and_b32 v4, 15, v1
v_lshl_add_u32 v4, v4, 2, s54
s_lshl_b32 s57, s{sW}, 11
v_add_u32 v5, s57, v13""")
        for g in range(3):
            a(f"s_add_u32 s57, s{sW}, {g+1}\ns_and_b32 s57, s57, 3\ns_lshl_b32 s56, s57, 11\ns_mul_i32 s57, s57, 12288\ns_add_u32 s57, s57, {XR}\nv_add_u32 v{6+g}, s57, v13\nv_add_u32 v{(9,11,15)[g]}, s56, v13")
        a(f"s_mov_b32 s56, {f32(c)}")
        zr = list(range(O, O + 64)) + list(range(S + 28, S + 32)) + list(range(P, P + 8))
        for s in range(28):
            a.wait(lg=f"w{s}")
            a(f"v_mfma_f32_32x32x16_bf16 {vr(AK,16)}, {vr(WB+4*(s%8),4)}, {vr(XF+4*s,4)}, {vr(AK,16) if s else 0}")
            if s + 6 < 28: reads_q(s + 6)
            n = 0
            while zr and zr[0] < XF + 4 * (s - 1) and n < 4:
                a(f"v_mov_b32 v{zr.pop(0)}, 0"); n += 1
        for r in zr + list(range(KV + 56, KV + 64)): a(f"v_mov_b32 v{r}, 0")
        self.stamp(6)
        for i in range(16): a(f"v_mul_f32 v{AK+i}, s56, v{AK+i}")
        for i in range(8): a(f"v_cvt_pk_bf16_f32 v{Q+24+i}, v{AK+2*i}, v{AK+2*i+1}")
        a(f"v_cndmask_b32 v{Q+30}, 0, v{Q+30}, s[60:61]\nv_cndmask_b32 v{Q+31}, 0, v{Q+31}, s[60:61]")
        a(f"ds_write_b128 v5, {vr(Q+24,4)} offset:{WKV}\nds_write_b128 v5, {vr(Q+28,4)} offset:{WKV+1024}")
        a(f"v_mov_b32 v{vFT}, 9\nds_write_b32 v{vFW}, v{vFT}")
        a.wait(vm="all")
        a(f"buffer_store_dword v3, v2, s[{WS}:{WS+3}], 0 offen sc1")
        self.lspin(vFR, 14, 9)
        for g in range(3):
            a(f"ds_read_b128 {vr(Q+8*g,4)}, v{(9,11,15)[g]} offset:{WKV}\nds_read_b128 {vr(Q+8*g+4,4)}, v{(9,11,15)[g]} offset:{WKV+1024}")
        a(f"v_mov_b32 v{vFT}, 10\nds_write_b32 v{vFW}, v{vFT}")
        self.stamp(7, 12)
        self.poll(4, 14)
        self.stamp(8, 13)
        a(f"s_lshl_b32 s52, s52, 16\ns_add_u32 s52, s52, {KVW}\nv_add_u32 v5, s52, v13\ns_lshl_b32 s57, s{sQB}, 12")
        adv = ["s_add_u32 s57, s57, 16384", "s_and_b32 s57, s57, 0xffff"]
        ld = lambda buf, i: f"buffer_load_dwordx4 {vr(KV+16*buf+4*i,4)}, v5, s[{WS}:{WS+3}], s57 offen offset:{1024*i} sc1"
        for t in (1, 2):
            a("\n".join(adv))
            for i in range(4): a(ld(t, i))
        a("\n".join(adv))
        a(f"""s_waitcnt lgkmcnt(0)
v_mfma_f32_32x32x16_bf16 {vr(S,16)}, {vr(KV,4)}, {vr(Q,4)}, 0
s_mov_b32 s62, 4
s_setprio 0
v_mfma_f32_32x32x16_bf16 {vr(S,16)}, {vr(KV+4,4)}, {vr(Q+4,4)}, {vr(S,16)}
s_nop 8""")
        a(".p2align 6"); a.label("L_att")
        def slot(u):
            t, g = divmod(u, 4)
            tp, gp = divmod((u - 1) % 16, 4); tn, gn = divmod((u + 1) % 16, 4)
            Sc, So = S + 16 * (u & 1), S + 16 * ((u + 1) & 1)
            cv = lambda i, s: f"v_cvt_pk_bf16_f32 v{P+i}, v{s+2*i}, v{s+2*i+1}"
            ex = lambda r: "\n".join(f"v_exp_f32 v{Sc+r+i}, v{Sc+r+i}" for i in range(4))
            Op = vr(O + 16 * gp, 16)
            a(f"v_mfma_f32_32x32x16_bf16 {Op}, {vr(KV+16*tp+8,4)}, {vr(P,4)}, {Op}")
            if g == 3: a("s_waitcnt vmcnt(7)")
            if g == 0 and u: a(adv[1])
            a(cv(6, So)); a(cv(7, So)); a(ex(0))
            a(f"v_mfma_f32_32x32x16_bf16 {vr(So,16)}, {vr(KV+16*tn,4)}, {vr(Q+8*gn,4)}, 0")
            if u == 15: a("s_sub_u32 s62, s62, 1")
            a(cv(0, Sc)); a(cv(1, Sc)); a(ex(4))
            a(f"v_mfma_f32_32x32x16_bf16 {vr(So,16)}, {vr(KV+16*tn+4,4)}, {vr(Q+8*gn+4,4)}, {vr(So,16)}")
            a(ld((t + 3) % 4, g))
            a(cv(2, Sc)); a(cv(3, Sc)); a(ex(8))
            a(f"v_mfma_f32_32x32x16_bf16 {Op}, {vr(KV+16*tp+12,4)}, {vr(P+4,4)}, {Op}")
            if g == 3: a(adv[0] if t else "s_add_u32 s57, s57, 20480")
            a(cv(4, Sc)); a(cv(5, Sc)); a(ex(12))
        for u in range(16): slot(u)
        a(adv[1])
        a("s_cmp_lg_u32 s62, 0\ns_cbranch_scc1 L_att")
        O3 = vr(O + 48, 16)
        a("s_setprio 3")
        a(f"""v_mfma_f32_32x32x16_bf16 {O3}, {vr(KV+56,4)}, {vr(P,4)}, {O3}
v_cvt_pk_bf16_f32 v{P+6}, v{S+28}, v{S+29}
v_cvt_pk_bf16_f32 v{P+7}, v{S+30}, v{S+31}""")
        self.stamp(9)
        for i in range(4): a(f"ds_write_b128 v6, {vr(O+4*i,4)} offset:{1024*i}")
        a(f"v_mfma_f32_32x32x16_bf16 {O3}, {vr(KV+60,4)}, {vr(P+4,4)}, {O3}")
        for g in range(1, 3):
            for i in range(4): a(f"ds_write_b128 v{6+g}, {vr(O+16*g+4*i,4)} offset:{4096*g+1024*i}")
        a(f"s_mul_i32 s57, s{sW}, 12288\ns_add_u32 s57, s57, {RED}\nv_add_u32 v6, s57, v13")
        a("s_waitcnt lgkmcnt(0)")
        self.stamp(10)
        a("s_barrier")
        self.stamp(11)
        for n in range(12): a.lg(f"ds_read_b128 {vr(O+4*n,4)}, v6 offset:{1024*n}", f"r{n//4}")
        Of = O + 48
        for g in range(3):
            a.wait(lg=f"r{g}")
            for i in range(8): a(f"v_pk_add_f32 {vr(Of+2*i,2)}, {vr(Of+2*i,2)}, {vr(O+16*g+2*i,2)}")
        a(f"v_mov_b32 v8, v{Of+12}\nv_mov_b32 v9, v{Of+12}")
        a(f"v_pk_add_f32 v[16:17], {vr(Of,2)}, {vr(Of+2,2)}")
        a("v_permlane32_swap_b32 v8, v9")
        for i in range(2, 8): a(f"v_pk_add_f32 v[16:17], v[16:17], {vr(Of+2*i,2)}")
        a(f"""v_add_f32 v16, v16, v17
v_mov_b32 v17, 0x1f8
s_mov_b32 s56, {f32(2.0**-60)}
s_mov_b32 s57, {f32(2.0**40)}
v_cmp_class_f32 vcc, v16, v17
v_cmp_le_f32 s[58:59], s56, v9
v_cmp_ge_f32 s[62:63], s57, v9
s_and_b64 vcc, vcc, s[58:59]
s_and_b64 vcc, vcc, s[62:63]
s_cmp_eq_u64 vcc, -1""")
        a("s_cbranch_scc0 L_fb" if not self.force_fb else "s_branch L_fb")
        a.label("L_norm")
        a("v_rcp_f32 v9, v9")
        for i in range(16): a(f"v_mul_f32 v{Of+i}, v9, v{Of+i}")
        for i in range(8): a(f"v_cvt_pk_bf16_f32 v{P+i}, v{Of+2*i}, v{Of+2*i+1}")
        a(f"v_cndmask_b32 v{P+6}, 0, v{P+6}, s[60:61]\nv_cndmask_b32 v{P+7}, 0, v{P+7}, s[60:61]")
        for i in range(2): a(f"buffer_store_dwordx4 {vr(P+4*i,4)}, v13, s[{WS}:{WS+3}], s55 offen offset:{1024*i} sc1")
        self.stamp(12)
        self.dump_stamps(0)
        a("s_endpgm")
        self.fb = (KV, Q + 24, Of, S, P)

    def fallback(self):
        a = self.a; KV, Qo, Of, S, P = self.fb
        a.label("L_fb")
        a(f"""s_waitcnt vmcnt(0)
s_lshl_b32 s52, s{sH}, 18
s_add_u32 s52, s52, {KVW}
s_add_u32 s56, s52, 0x40000
s_mov_b32 s57, s52
v_mov_b32 v8, 0xff800000""")
        qk = f"""v_mfma_f32_32x32x16_bf16 {vr(S,16)}, {vr(KV,4)}, {vr(Qo,4)}, 0
v_mfma_f32_32x32x16_bf16 {vr(S,16)}, {vr(KV+4,4)}, {vr(Qo+4,4)}, {vr(S,16)}"""
        ld = lambda i: f"buffer_load_dwordx4 {vr(KV+4*i,4)}, v13, s[{WS}:{WS+3}], s57 offen offset:{1024*i} sc1"
        a.label("L_fb1")
        a(ld(0)); a(ld(1)); a("s_waitcnt vmcnt(0)"); a(qk)
        for i in range(8): a(f"v_max3_f32 v8, v8, v{S+2*i}, v{S+2*i+1}")
        a("s_add_u32 s57, s57, 4096\ns_cmp_lt_u32 s57, s56\ns_cbranch_scc1 L_fb1")
        a("v_mov_b32 v9, v8\nv_permlane32_swap_b32 v8, v9\nv_max_f32 v8, v8, v9\ns_mov_b32 s57, s52")
        for i in range(16): a(f"v_mov_b32 v{Of+i}, 0")
        a.label("L_fb2")
        for i in range(4): a(ld(i))
        a("s_waitcnt vmcnt(0)"); a(qk)
        for i in range(16): a(f"v_sub_f32 v{S+i}, v{S+i}, v8")
        for i in range(16): a(f"v_exp_f32 v{S+i}, v{S+i}")
        for i in range(8): a(f"v_cvt_pk_bf16_f32 v{P+i}, v{S+2*i}, v{S+2*i+1}")
        a(f"""v_mfma_f32_32x32x16_bf16 {vr(Of,16)}, {vr(KV+8,4)}, {vr(P,4)}, {vr(Of,16)}
v_mfma_f32_32x32x16_bf16 {vr(Of,16)}, {vr(KV+12,4)}, {vr(P+4,4)}, {vr(Of,16)}
s_add_u32 s57, s57, 4096
s_cmp_lt_u32 s57, s56
s_cbranch_scc1 L_fb2
s_nop 15
v_mov_b32 v8, v{Of+12}
v_mov_b32 v9, v{Of+12}
s_nop 1
v_permlane32_swap_b32 v8, v9
s_nop 1
s_branch L_norm""")

    def roleB(self):
        a = self.a
        a(".p2align 6"); a.label("L_B"); a.vq = ["pf"]; a.lq = []
        KR, VR, HR, WT, KF, U = 32, 52, 60, 72, 104, 20
        a(f"""s_setprio 1
v_lshrrev_b32 v4, 2, v1
v_and_b32 v5, 3, v1
v_lshlrev_b32 v13, 4, v1
s_and_b32 s57, s{sW}, 1
s_lshr_b32 s58, s{sW}, 1
s_and_b32 s59, s2, 31
s_lshl_b32 s59, s59, 1
s_add_u32 s59, s59, s57
s_lshr_b32 s60, s2, 5
s_lshl_b32 s60, s60, 1
s_add_u32 s60, s60, s58
s_mul_i32 s61, s59, 28672
s_lshl_b32 s62, s60, 6
s_add_u32 s61, s61, s62
v_mul_u32_u24 v10, 1792, v4
v_lshl_add_u32 v10, v5, 4, v10
v_add_u32 v10, s61, v10""")
        for jj in range(3): a(f"v_subrev_u32 v{14+jj}, {896*(3-jj)}, v10")
        a(f"""s_mul_i32 s54, s{sW}, 2176
s_add_u32 s54, s54, {PB}
s_mov_b32 m0, s54
s_lshl_b32 s56, s60, 8
v_lshl_add_u32 v18, v1, 2, s56
s_lshl_b32 s61, s57, 11
v_add_u32 v11, s61, v13
s_lshl_b32 s61, s2, 1
s_add_u32 s61, s61, s58
s_lshl_b32 s61, s61, 12
s_mov_b32 s{R3+2}, 4096
s_mov_b32 s{R3+3}, 0x20000
s_cmp_lt_u32 s2, 224
s_waitcnt lgkmcnt(0)
s_load_dword s{sF}, s[26:27], 0
s_cbranch_scc0 L_nold""")
        srd(a, R1, 12, 1835008)
        a.vm("global_load_lds_dword v18, s[16:17]", "sk")
        for jj in range(3): a.vm(f"buffer_load_dwordx4 {vr(KR+4*jj,4)}, v{14+jj}, s[{R1}:{R1+3}], 0 offen", "k")
        for jj in range(2): a.vm(f"buffer_load_dwordx4 {vr(KR+12+4*jj,4)}, v10, s[{R1}:{R1+3}], 0 offen offset:{896*jj}", "k")
        for jj in range(2): a.vm(f"global_load_dwordx4 {vr(VR+4*jj,4)}, v10, s[14:15] offset:{896*jj}", "v")
        a(f"s_add_u32 s{R3}, s18, s61\ns_addc_u32 s{R3+1}, s19, 0")
        a.label("L_nold")
        a(f"""s_lshr_b32 s56, s2, 3
s_lshl_b32 s56, s56, 2
s_add_u32 s56, s56, s{sW}
s_mul_i32 s56, s56, 9408
s_and_b32 s62, s2, 1
s_mul_i32 s62, s62, 384
s_add_u32 s56, s56, s62
v_min_u32 v6, 3, v4
v_mul_u32_u24 v6, 2688, v6
v_lshl_add_u32 v6, v5, 7, v6
s_lshl_b32 s62, s{sW}, 31
s_lshr_b32 s62, s62, 31
s_mul_i32 s62, s62, 1344
s_sub_u32 s56, s56, s62
v_add_u32 v6, s56, v6""")
        a.vm("global_load_dword v253, v6, s[6:7]", "pq")
        self.stamp(None, 1)
        a(f"""s_mul_i32 s56, s{sW}, 4160
s_add_u32 s56, s56, {HC}
v_and_b32 v7, 7, v1
v_lshl_add_u32 v7, v7, 2, s56
v_mov_b32 v8, 0
v_mov_b32 v9, 0
s_lshl_b32 s56, s{sW}, 9
s_add_u32 s56, s56, {FLG}
v_lshl_add_u32 v6, v1, 3, s56
s_mul_i32 s55, s{sW}, 4608
s_add_u32 s55, s55, {UA}
v_lshl_add_u32 v2, v1, 3, s55
ds_write_b32 v7, v8
ds_write_b64 v6, v[8:9]
ds_write_b64 v2, v[8:9]
s_mov_b32 s{WS}, s26
s_mov_b32 s{WS+1}, s27
v_lshl_add_u32 v18, v5, 6, s54
s_mov_b32 s61, 0xffff0000
s_waitcnt lgkmcnt(0)
s_add_u32 s{sF}, s{sF}, 0x9e3779b9
s_barrier
s_cmp_lt_u32 s2, 224
s_cbranch_scc0 {"L_tl" if OPT.get("tl") else "L_wo"}""")
        self.stamp(1, 2)
        a.wait(vm="sk")
        for i in range(4): a.lg(f"ds_read_b128 {vr(KF+4*i,4)}, v18 offset:{16*i}", "sk")
        a(f"""v_mul_u32_u24 v19, 544, v5
v_xor_b32 v14, 3, v4
v_lshl_add_u32 v15, v4, 2, v19
v_add_u32 v15, s54, v15
v_lshl_add_u32 v19, v14, 2, v19
v_add_u32 v19, s54, v19
v_lshrrev_b32 v14, 5, v1
v_mul_u32_u24 v14, 544, v14
v_bfe_u32 v16, v1, 2, 3
v_lshl_add_u32 v14, v16, 6, v14
v_lshl_add_u32 v14, v5, 4, v14
v_add_u32 v14, s54, v14
v_lshrrev_b32 v16, 3, v1
v_lshlrev_b32 v16, 13, v16
v_and_b32 v12, 7, v1
v_lshl_add_u32 v16, v12, 4, v16
s_lshl_b32 s56, s60, 17
s_lshl_b32 s62, s59, 7
s_add_u32 s56, s56, s62
v_add_u32 v16, s56, v16""")
        a.wait(lg="sk")
        for j in range(8):
            a(f"v_lshlrev_b32 v{WT+j}, 16, v{KF+2*j}\nv_and_b32 v{WT+8+j}, s61, v{KF+2*j}\nv_lshlrev_b32 v{WT+16+j}, 16, v{KF+2*j+1}\nv_and_b32 v{WT+24+j}, s61, v{KF+2*j+1}")
        a.wait(vm="k")
        self.stamp(2, 3)
        for r in range(5):
            for d in range(4):
                a(f"v_lshlrev_b32 v{KF+8*r+2*d}, 16, v{KR+4*r+d}\nv_and_b32 v{KF+8*r+2*d+1}, s61, v{KR+4*r+d}")
        AC = 144; VF = 160
        for t in range(2):
            for d in range(4):
                acc = vr(AC + 8 * t + 2 * d, 2)
                for tap in (3, 2, 1, 0):
                    kk = vr(KF + 8 * (t + 3 - tap) + 2 * d, 2); ww = vr(WT + 8 * tap + 2 * d, 2)
                    a(f"v_pk_mul_f32 {acc}, {kk}, {ww}" if tap == 3 else f"v_pk_fma_f32 {acc}, {kk}, {ww}, {acc}")
        a.wait(vm="v")
        for t in range(2):
            for d in range(4):
                a(f"v_lshlrev_b32 v{VF+8*t+2*d}, 16, v{VR+4*t+d}\nv_and_b32 v{VF+8*t+2*d+1}, s61, v{VR+4*t+d}")
        for i in range(8): a(f"v_pk_mul_f32 {vr(AC+2*i,2)}, {vr(AC+2*i,2)}, {vr(VF+2*i,2)}")
        for j in range(8):
            a(f"v_cvt_pk_bf16_f32 v{U+j}, v{AC+8+j}, v{AC+j}")
        for j in range(8): a.lg(f"ds_write_b32 v19, v{U+j} offset:{64*j}", "uw")
        for i in range(2): a.lg(f"ds_read_b128 {vr(KR+4*i,4)}, v14 offset:{1088*i}", f"ur{i}")
        a(f"s_mov_b32 s62, {UW}\ns_mov_b32 s63, {UW+65536}")
        for i in range(2):
            a.wait(lg=f"ur{i}")
            a.vm(f"buffer_store_dwordx4 {vr(KR+4*i,4)}, v16, s[{WS}:{WS+3}], s{62+i} offen sc1", "us")
        self.stamp(3, 4)
        a(f"s_lshl_b32 s56, s60, 6\ns_add_u32 s56, s56, s59\ns_lshl_b32 s56, s56, 2\ns_add_u32 s56, s56, {F2}")
        self.lane0_addr(2, 56)
        a(f"""v_mov_b32 v3, s{sF}
s_lshl_b32 s56, s{sW}, 2
s_add_u32 s56, s56, {FLG+1024}
v_add_u32 v250, s56, v13
v_xor_b32 v251, 4, v250
v_subrev_u32 v248, 4, v11
v_add_u32 v249, 1020, v11
v_mov_b32 v247, v11
s_mul_i32 s56, s58, 8320
s_add_u32 s56, s56, {HC+32}
v_add_u32 v252, s56, v11
s_mov_b32 s56, {FLG}
v_lshl_add_u32 v246, v1, 2, s56""")
        a(f"""s_lshr_b32 s56, s2, 4
s_lshl_b32 s56, s56, 8
s_add_u32 s56, s56, {F2}
v_lshl_add_u32 v6, v1, 2, s56
v_lshlrev_b32 v7, 7, v4
v_lshl_add_u32 v7, v5, 4, v7
s_lshl_b32 s56, s2, 13
s_lshl_b32 s62, s58, 6
s_add_u32 s56, s56, s62
v_add_u32 v7, s56, v7
v_and_b32 v8, 15, v1
v_lshrrev_b32 v9, 4, v1
v_lshlrev_b32 v11, 5, v8
v_lshlrev_b32 v12, 4, v9
v_sub_u32 v17, v11, v12
s_lshl_b32 s56, s57, 8
s_sub_u32 s62, s55, s56
s_add_u32 s62, s62, {512+16-192}
v_add_u32 v17, s62, v17
v_lshl_add_u32 v18, v9, 3, v11
v_add_u32 v18, s54, v18
v_lshrrev_b32 v11, 1, v8
v_lshl_add_u32 v11, v11, 2, v12
v_and_b32 v8, 1, v8
v_xor_b32 v8, 1, v8
v_mul_u32_u24 v8, 4160, v8
v_add_u32 v11, v11, v8
s_mul_i32 s62, s58, 8320
s_add_u32 s62, s62, s56
s_add_u32 s62, s62, {HC+4}
v_add_u32 v28, s62, v11
v_add_u32 v29, 1024, v28
v_add_u32 v30, 2048, v28
v_add_u32 v31, 3072, v28""")
        TB, XB, ACC = 64, 128, 192
        def rdT(rho):
            o = []
            for m in range(8):
                b = TB + 32 * (rho & 1) + 4 * m; d = (m & 1) * 128 + 16 * rho
                o.append(f"ds_read2_b32 {vr(b,2)}, v{28+(m>>1)} offset0:{d} offset1:{d+1}")
                o.append(f"ds_read2_b32 {vr(b+2,2)}, v{28+(m>>1)} offset0:{d+2} offset1:{d+3}")
            return o
        def rdX(rho):
            return [f"ds_read_b128 {vr(XB+32*(rho&1)+4*n,4)}, v17 offset:{512*n-64*rho+192}" for n in range(8)]
        self.stamp(4)
        a(f"s_waitcnt vmcnt(0)\nbuffer_store_dword v3, v2, s[{WS}:{WS+3}], 0 offen sc1"); a.vq.clear()
        self.lspin(246, 12, int(OPT.get("hw", 8)), sleep=4)
        self.stamp(5, 5)
        for i in range(2):
            a.vm(f"buffer_load_dwordx4 {vr(HR+4*i,4)}, v247, s[{R3}:{R3+3}], 0 offen offset:{1024*i}", "h")
            a.vm(f"buffer_load_dword v{HR+8+i}, v{248+i}, s[{R3}:{R3+3}], 0 offen", "h")
        a(f"""s_lshr_b32 s56, s2, 3
s_lshl_b32 s56, s56, 2
s_add_u32 s56, s56, s{sW}
s_mul_i32 s56, s56, 3584
v_min_u32 v8, 27, v1
v_lshl_add_u32 v8, v8, 7, s56
global_load_dword v253, v8, s[8:9]""")
        self.poll(6, 12, sleep=2)
        self.stamp(6, 6)
        a(f"s_add_u32 m0, s55, 512\ns_mov_b32 s56, {UW}")
        for i in range(4):
            a(f"buffer_load_dwordx4 v7, s[{WS}:{WS+3}], s56 offen offset:{1024*i} sc1 lds\ns_add_u32 s56, s56, 1024")
        for i in range(2):
            a(f"ds_write_b128 v252, {vr(HR+4*i,4)} offset:{1024*i}")
            for d in range(4):
                a(f"v_alignbit_b32 v{WT+4*i+d}, v{HR+4*i+d}, v{HR+4*i+d-1 if d else HR+8+i}, 16")
            a(f"ds_write_b128 v252, {vr(WT+4*i,4)} offset:{4160+1024*i}")
        a("v_mov_b32 v8, 1\nds_write_b32 v250, v8")
        self.lspin(251, 12, 1)
        for t in rdT(0): a(t)
        a("s_waitcnt vmcnt(0)")
        self.stamp(None, 7)
        for t in rdX(0): a(t)
        for rho in range(4):
            a("s_waitcnt lgkmcnt(0)")
            pre = (rdX(rho + 1) + rdT(rho + 1)) if rho < 3 else []
            for m in range(8):
                for c in range(7, m - 1, -1):
                    acc = vr(ACC + 4 * c, 4)
                    a(f"v_mfma_f32_16x16x32_bf16 {acc}, {vr(TB+32*(rho&1)+4*m,4)}, {vr(XB+32*(rho&1)+4*(c-m),4)}, {acc if (rho or m) else 0}")
                    if pre: a(pre.pop(0))
        self.stamp(7, 8)
        a(f"""s_xor_b32 s56, s{sW}, 1
s_mul_i32 s62, s56, 4608
s_add_u32 s62, s62, {UA}
v_add_u32 v8, s55, v13
v_add_u32 v11, s62, v13
v_mov_b32 v9, 2
v_add_u32 v12, s54, v13
s_cmp_eq_u32 s57, 0
s_cbranch_scc1 L_nosw""")
        for i in range(16): a(f"v_swap_b32 v{ACC+i}, v{ACC+16+i}")
        a.label("L_nosw")
        for i in range(4): a(f"ds_write_b128 v8, {vr(ACC+16+4*i,4)} offset:{1024*i}")
        a("ds_write_b32 v250, v9")
        self.lspin(251, 8, 2)
        for i in range(4): a.lg(f"ds_read_b128 {vr(TB+4*i,4)}, v11 offset:{1024*i}", f"e{i}")
        for i in range(4):
            a.wait(lg=f"e{i}")
            a(f"""v_pk_add_f32 {vr(ACC+4*i,2)}, {vr(ACC+4*i,2)}, {vr(TB+4*i,2)}
v_pk_add_f32 {vr(ACC+4*i+2,2)}, {vr(ACC+4*i+2,2)}, {vr(TB+4*i+2,2)}
v_cvt_pk_bf16_f32 v{XB+2*i}, v{ACC+4*i}, v{ACC+4*i+1}
v_cvt_pk_bf16_f32 v{XB+2*i+1}, v{ACC+4*i+2}, v{ACC+4*i+3}""")
            a.lg(f"ds_write_b64 v18, {vr(XB+2*i,2)} offset:{512*i}", "yw")
        for i in range(2): a.lg(f"ds_read_b128 {vr(TB+4*i,4)}, v12 offset:{1024*i}", f"y{i}")
        a(f"""s_lshl_b32 s56, s57, 12
s_add_u32 s56, s56, {YW}
s_lshr_b32 s62, s2, 4
s_lshl_b32 s62, s62, 1
s_add_u32 s62, s62, s57
s_lshl_b32 s62, s62, 5
s_and_b32 s63, s2, 15
s_lshl_b32 s63, s63, 1
s_add_u32 s63, s63, s58
s_add_u32 s62, s62, s63
s_lshl_b32 s62, s62, 2
s_add_u32 s62, s62, {F3}""")
        self.lane0_addr(2, 62)
        for i in range(2):
            a.wait(lg=f"y{i}")
            a(f"buffer_store_dwordx4 {vr(TB+4*i,4)}, v7, s[{WS}:{WS+3}], s56 offen offset:{2048*i} sc1")
        a(f"s_waitcnt vmcnt(0)\nbuffer_store_dword v3, v2, s[{WS}:{WS+3}], 0 offen sc1")
        self.stamp(8)
        a.label("L_wo")
        WO = 64
        a(f"""s_mul_i32 s54, s{sW}, {ARENA}
s_and_b32 s56, s{sH}, 12
s_add_u32 s56, s56, s{sW}
s_mul_i32 s56, s56, 56
s_and_b32 s56, s56, 0xfff0
v_mul_u32_u24 v6, 896, v4
v_lshl_add_u32 v6, v5, 4, v6
v_lshrrev_b32 v8, 5, v1
v_bfe_u32 v9, v1, 2, 2
v_lshl_add_u32 v9, v8, 2, v9
v_lshlrev_b32 v9, 6, v9
v_bfe_u32 v8, v1, 4, 1
v_lshl_add_u32 v9, v8, 5, v9
v_add_u32 v8, s57, v5
v_lshl_add_u32 v9, v8, 3, v9
v_add_u32 v9, s54, v9""")
        srd(a, R0, 8, 401408)
        a(f"s_mov_b32 s62, {FLG}\nv_lshl_add_u32 v8, v1, 2, s62")
        self.lspin(8, 12, 10, sleep=4)
        for rnd in range(2):
            a(f"s_mov_b32 s62, s54\ns_add_u32 s63, s56, {rnd*224*896}\ns_mov_b32 s55, 15")
            a.label(f"L_wo{rnd}")
            a(f"""s_mov_b32 m0, s62
s_add_u32 s62, s62, 1024
buffer_load_dwordx4 v6, s[{R0}:{R0+3}], s63 offen lds
s_add_u32 s63, s63, 14336
s_sub_u32 s55, s55, 1
s_cmp_lg_u32 s55, 0
s_cbranch_scc1 L_wo{rnd}
s_waitcnt vmcnt(0)""")
            for hh in range(8):
                for n in range(4):
                    a(f"ds_read_b64_tr_b16 {vr(WO+64*rnd+8*hh+2*n,2)}, v9 offset:{(28*hh+8*n)*64}")
            a("s_waitcnt lgkmcnt(0)")
        self.stamp(9)
        srd(a, R0, 22, 3670016)
        a(f"""s_and_b32 s53, s{sH}, 3
s_lshl_b32 s56, s{sW}, 4
s_add_u32 s56, s56, s53
s_lshl_b32 s56, s56, 5
s_add_u32 s56, s56, s{sQB}
s_lshl_b32 s56, s56, 2
s_add_u32 s56, s56, {F1}
v_lshl_add_u32 v6, v5, 9, s56""")
        self.poll(6, 12, sleep=2)
        a(f"v_mov_b32 v19, {OOB}\ns_cmp_ge_u32 s2, 224\ns_cbranch_scc1 L_p3")
        QR, DR, YR, YT = 32, 40, 44, 52
        a(f"""s_lshl_b32 s56, s60, 6
v_lshl_add_u32 v6, v5, 4, s56
global_load_dwordx4 {vr(QR,4)}, v10, s[10:11]
global_load_dwordx4 {vr(QR+4,4)}, v10, s[10:11] offset:896
global_load_dwordx4 {vr(DR,4)}, v6, s[20:21]
s_lshl_b32 s56, s60, 1
s_lshr_b32 s62, s59, 5
s_add_u32 s56, s56, s62
s_lshl_b32 s56, s56, 7
s_add_u32 s56, s56, {F3}
v_and_b32 v6, 31, v1
v_lshl_add_u32 v6, v6, 2, s56
s_mul_i32 s56, s59, 28672
s_add_u32 s56, s56, 896
v_mul_u32_u24 v19, 1792, v4
v_add3_u32 v19, v19, v10, s56""")
        self.poll(6, 12, sleep=2)
        self.stamp(10)
        a(f"s_mov_b32 s62, {YW}\ns_mov_b32 s63, {YW+65536}")
        for i in range(2): a.vm(f"buffer_load_dwordx4 {vr(YR+4*i,4)}, v16, s[{WS}:{WS+3}], s{62+i} offen sc1", f"y{i}")
        for i in range(2):
            a.wait(vm=f"y{i}")
            a(f"ds_write_b128 v14, {vr(YR+4*i,4)} offset:{1088*i}")
        for j in range(8): a(f"ds_read_b32 v{YT+j}, v15 offset:{64*j}")
        a.label("L_p3")
        self.stamp(11)
        a("s_waitcnt lgkmcnt(0)\ns_barrier")
        QF, DF, T0, Y0 = 192, 208, 216, 232
        for t in range(2):
            for d in range(4): a(f"v_lshlrev_b32 v{QF+8*t+2*d}, 16, v{QR+4*t+d}\nv_and_b32 v{QF+8*t+2*d+1}, s61, v{QR+4*t+d}")
        for d in range(4): a(f"v_lshlrev_b32 v{DF+2*d}, 16, v{DR+d}\nv_and_b32 v{DF+2*d+1}, s61, v{DR+d}")
        for j in range(8): a(f"v_and_b32 v{T0+j}, s61, v{U+j}\nv_lshlrev_b32 v{T0+8+j}, 16, v{U+j}")
        for j in range(8): a(f"v_lshlrev_b32 v{Y0+j}, 16, v{YT+j}\nv_and_b32 v{Y0+8+j}, s61, v{YT+j}")
        for i in range(8):
            a(f"v_pk_fma_f32 {vr(T0+2*i,2)}, {vr(T0+2*i,2)}, {vr(DF+2*(i%4),2)}, {vr(Y0+2*i,2)}")
        for i in range(8): a(f"v_pk_mul_f32 {vr(T0+2*i,2)}, {vr(T0+2*i,2)}, {vr(QF+2*i,2)}")
        for i in range(8): a(f"v_cvt_pk_bf16_f32 v{U+i}, v{T0+2*i}, v{T0+2*i+1}")
        a(f"""s_lshl_b32 s52, s{sQB}, 2
s_add_u32 s52, s52, s53
s_lshl_b32 s53, s52, 2
s_add_u32 s53, s53, s{sW}
s_lshl_b32 s53, s53, 13
s_add_u32 s53, s53, {OW}
s_add_u32 s55, s53, 4096
s_lshl_b32 s54, s{sW}, 13
v_add_u32 v6, s54, v13
v_and_b32 v8, 31, v1
v_mul_u32_u24 v8, 240, v8
v_lshrrev_b32 v9, 5, v1
s_mul_i32 s56, s{sW}, 56
s_add_u32 s56, s56, {OT}
v_lshl_add_u32 v7, v9, 3, v8
v_add_u32 v7, s56, v7
v_add_u32 v11, 48, v7
v_add_u32 v8, {OT+224}, v8
v_cmp_eq_u32 vcc, 0, v9
v_cndmask_b32 v8, v8, v11, vcc
s_mul_i32 s52, s52, 57344
s_lshr_b32 s56, s{sH}, 2
s_mul_i32 s56, s56, 224
s_add_u32 s52, s52, s56
s_mov_b32 s56, 4682""")
        for i in range(2):
            a(f"""v_and_b32 v9, 255, v0
v_add_u32 v9, {256*i}, v9
v_mul_u32_u24 v11, s56, v9
v_lshrrev_b32 v11, 16, v11
v_mul_u32_u24 v12, 14, v11
v_sub_u32 v12, v9, v12
v_lshlrev_b32 v12, 4, v12
v_mul_u32_u24 v{14+i}, 240, v11
v_add_u32 v{14+i}, v{14+i}, v12
v_mul_u32_u24 v{16+i}, 1792, v11
v_add_u32 v{16+i}, v{16+i}, v12""")
        a(f"v_cmp_gt_u32 vcc, 448, v9\nv_mov_b32 v12, {OOB}\nv_cndmask_b32 v17, v12, v17, vcc\ns_mov_b32 s63, {SPIN}")
        OL = 224
        a.label("L_og"); a.vq.clear()
        for i in range(8): a.vm(f"buffer_load_dwordx4 {vr(OL+4*i,4)}, v13, s[{WS}:{WS+3}], s{(53,55)[i//4]} offen offset:{1024*(i%4)} sc1", f"o{i}")
        a("s_sub_u32 s63, s63, 1")
        for i in range(8):
            a.wait(vm=f"o{i}")
            a(f"v_max_u32 v12, v{OL}, v{OL+2}" if i == 0 else f"v_max3_u32 v12, v12, v{OL+4*i}, v{OL+4*i+2}")
            a(f"ds_write_b128 v6, {vr(OL+4*i,4)} offset:{OST+1024*i}")
        a("v_cmp_eq_u32 vcc, -1, v12\ns_cmp_eq_u32 s63, 0\ns_cselect_b64 vcc, 0, vcc\ns_cbranch_vccnz L_og")
        self.stamp(12)
        for t in range(2): a(f"buffer_store_dwordx4 {vr(U+4*t,4)}, v19, s[{R0}:{R0+3}], 0 offen offset:{1792*t}")
        a("s_waitcnt lgkmcnt(0)\ns_barrier")
        self.stamp(13)
        OB, AO = 192, 32
        a.lq.clear()
        rdO = lambda ks: a.lg(f"ds_read_b128 {vr(OB+4*(ks%8),4)}, v13 offset:{OST+1024*ks}", f"o{ks}")
        for ks in range(6): rdO(ks)
        for ks in range(32):
            a.wait(lg=f"o{ks}")
            a(f"v_mfma_f32_32x32x16_bf16 {vr(AO,16)}, {vr(WO+4*ks,4)}, {vr(OB+4*(ks%8),4)}, {vr(AO,16) if ks else 0}")
            if ks + 6 < 32: rdO(ks + 6)
        a(f"s_or_b32 s56, s2, s{sW}\ns_cmp_eq_u32 s56, 0\ns_cselect_b32 s56, 0, {OOB}\nv_mov_b32 v2, s56\nv_mov_b32 v3, s{sF}")
        a(f"buffer_store_dword v3, v2, s[{WS}:{WS+3}], 0 offen sc1")
        for i in range(8): a(f"v_cvt_pk_bf16_f32 v{48+i}, v{AO+2*i}, v{AO+2*i+1}")
        for j in range(3): a(f"ds_write_b64 v7, {vr(48+2*j,2)} offset:{16*j}")
        a("ds_write_b64 v8, v[54:55]\ns_waitcnt lgkmcnt(0)\ns_barrier")
        for i in range(2): a.lg(f"ds_read_b128 {vr(48+4*i,4)}, v{14+i} offset:{OT}", f"t{i}")
        for i in range(2):
            a.wait(lg=f"t{i}")
            a(f"buffer_store_dwordx4 {vr(48+4*i,4)}, v{16+i}, s[{R0}:{R0+3}], s52 offen")
        self.stamp(14)
        if self.stamps: a("s_waitcnt vmcnt(0)")
        self.stamp(15, 15)
        self.dump_stamps(1)
        a.label("L_end")
        a("s_endpgm")
        if OPT.get("tl"):
            a.label("L_tl")
            a(f"s_bfe_u32 s56, s2, 0x20003\ns_lshl_b32 s56, s56, 2\ns_add_u32 s56, s56, s{sW}\ns_lshl_b32 s56, s56, 16")
            for base, n in ((18, 1835008), (8, 401408), (26, 0xC00000), (10, 1835008), (22, 3670016), (20, 896)):
                for j in range((n + (1 << 20) - 1) >> 20):
                    a(f"s_add_u32 s62, s56, {j << 20}\ns_min_u32 s62, s62, {n - 4}\ns_load_dword s63, s[{base}:{base+1}], s62")
            a("s_waitcnt lgkmcnt(0)\ns_branch L_wo")

    def build(self):
        self.entry(); self.roleA(); self.roleB()
        self.a.label("L_hot_end")
        self.fallback()
        body, added = self.a.finish()
        head = open(f"cdna_kernels/{NAME}.s.ref").read().split("; Override launch")[0]
        return head + f"""; Generated by gen/gen.py (hand-designed schedule).  One launch, 256 workgroups of 8 waves:
; waves 0-3: QKV projection, attention; waves 4-7: SSM branch, output projection.
; @launch grid=(256,1,1) block=(512,1,1) lds={LDS}
.amdgcn_target "amdgcn-amd-amdhsa--gfx950"
.text
.globl {NAME}_kernel
.p2align 8
.type {NAME}_kernel,@function
.set CODE_BYTES, L_hot_end - {NAME}_kernel - 16
{NAME}_kernel:
{body}
.section .rodata,"a"
.p2align 6
.amdhsa_kernel {NAME}_kernel
  .amdhsa_next_free_vgpr 256
  .amdhsa_next_free_sgpr 102
  .amdhsa_accum_offset 256
  .amdhsa_group_segment_fixed_size 0
  .amdhsa_kernarg_size 96
  .amdhsa_user_sgpr_count 2
  .amdhsa_user_sgpr_kernarg_segment_ptr 1
  .amdhsa_system_sgpr_workgroup_id_x 1
.end_amdhsa_kernel
"""

if __name__ == "__main__":
    out = sys.argv[1] if len(sys.argv) > 1 else f"cdna_kernels/{NAME}.s"
    OPT.update(dict(x.split("=") for x in sys.argv if "=" in x))
    NT = OPT.get("nt", "")
    g = Gen(stamps=2 if "stamps2" in sys.argv else int("stamps" in sys.argv), force_fb="fb" in sys.argv)
    open(out, "w").write(g.build())
```
